```python
import torch

def _softmax(x, axis=-1):
    return torch.softmax(x, dim=axis)

def _gelu(x):
    return torch.nn.functional.gelu(x, approximate='tanh')

def _silu(x):
    return torch.nn.functional.silu(x)

def _sigmoid(x):
    return torch.sigmoid(x)

def _layernorm(x, axis=-1, eps=1e-05):
    m = x.mean(dim=axis, keepdim=True)
    v = x.var(dim=axis, keepdim=True, unbiased=False)
    return (x - m) / torch.sqrt(v + eps)

def _scatter_add(tgt, idx, src, axis=0):
    return tgt.clone().index_add_(axis, idx, src)

def _segment_sum(src, seg, n):
    out = torch.zeros((n,) + src.shape[1:], dtype=src.dtype)
    return out.index_add_(0, seg, src)

def _pad(x, pw):
    flat = tuple((v for pair in reversed(pw) for v in pair))
    return torch.nn.functional.pad(x, flat)
kernel_name = 'standalone__autoregressive_conv_wavernn__speech'

def setup_inputs():

    _w = lambda a: (lambda t: t.to(torch.bfloat16) if t.is_floating_point() else t)(torch.as_tensor(a))
    B, T, D, K = (2, 16000, 512, 5)
    return {'x': _w((lambda *s: torch.randn(*s, dtype=torch.bfloat16) * 0.05)(B, T, D)), 'w': _w((lambda *s: torch.randn(*s, dtype=torch.bfloat16) * 0.05)(K, D, 2 * D))}

def reference(x, w):
    B, T, D = x.shape
    K = w.shape[0]
    dil = 2
    pad = (K - 1) * dil
    xp = _pad(x, ((0, 0), (pad, 0), (0, 0)))
    h = torch.einsum('btd,de->bte', xp[:, 0:T, :], w[0])
    for i in range(1, K):
        h = h + torch.einsum('btd,de->bte', xp[:, i * dil:i * dil + T, :], w[i])
    f, g = (h[..., :D].clone(), h[..., D:].clone())
    return torch.tanh(f) * _sigmoid(g)
```

```python
import sys

NAME = "standalone__autoregressive_conv_wavernn__speech"
T = 16000
ROWB = 1024
BATCHB = T * ROWB
WPB = 5 * 512 * 1024 * 2
SLOT_XOR = 0x10000
CLS = 17 * 128
LDS_BYTES = 0x10000 + 34816

D = 4
R = 6

out = []
def e(s): out.append("    " + s)
def lab(s): out.append(s + ":")
def cm(s): out.append("    ; " + s)

def WREG(st, tap, nb):
    b = st * 80 + (tap * 4 + nb) * 4
    return "a[%d:%d]" % (b, b + 3)
def XREG(slot):
    b = 160 + slot * 4
    return "a[%d:%d]" % (b, b + 3)
def ACC(p, j, nb):
    idx = (p * 8 + j) * 4 + nb
    if idx < 46:
        return ('v', 72 + idx * 4)
    return ('a', 184 + (idx - 46) * 4)
def ACCS(p, j, nb):
    k, b = ACC(p, j, nb)
    return "%s[%d:%d]" % (k, b, b + 3)

V_TID = 0
V_XA = 1
V_WOFF = 5
V_OOFF = 6
V_DOFF = 8
V_DCUR = 17
V_T = 26
S_XSRD = 4
S_WSRD = 8
S_OSRD = 12
S_XPTR = 16
S_OPTR = 18
S_WPTR = 20
S_WAVE = 22
S_MT = 23
S_NT = 24
S_XOFF = 25
S_M0 = 26
S_M0H = 27
S_WOFF = 28
S_WBASE = 29
S_CNT = 30
S_HEXEC = 32
S_T0 = 34
S_OBASE = 40
S_TILE = 41
S_C1 = 42
S_C2 = 43
S_TB = 44
S_OCOL = 45

def steps_natural():
    st = []
    for ks in range(2):
        for p in range(2):
            for q in range(12):
                st.append((ks, p, q))
    return st

def xread(step, slot):
    ks, p, q = step
    s = 1 if q >= 8 else 0
    c = (p + 2 * q) % 16
    return "ds_read_b128 %s, v%d offset:%d" % (XREG(slot), V_XA + s * 2 + ks, c * CLS)

def tile_setup_load(first):
    ins = []
    ins.append("s_cmp_ge_u32 s%d, 63" % S_T0)
    ins.append("s_cselect_b32 s%d, 63, 0" % (S_T0 + 1))
    ins.append("s_cselect_b32 s%d, %d, 0" % (S_T0 + 2, BATCHB))
    ins.append("s_sub_u32 s%d, s%d, s%d" % (S_T0 + 1, S_T0, S_T0 + 1))
    ins.append("s_add_u32 s%d, s%d, s%d" % (S_XSRD, S_XPTR, S_T0 + 2))
    ins.append("s_addc_u32 s%d, s%d, 0" % (S_XSRD + 1, S_XPTR + 1))
    ins.append("s_cmp_lt_u32 s%d, 126" % S_T0)
    ins.append("s_cselect_b32 s%d, %d, 0" % (S_XSRD + 2, BATCHB))
    ins.append("s_lshl_b32 s%d, s%d, 18" % (S_TB, S_T0 + 1))
    ins.append("s_sub_u32 s%d, s%d, 8192" % (S_TB, S_TB))
    for k in range(9):
        ins.append("v_add_u32 v%d, s%d, v%d" % (V_DCUR + k, S_TB, V_DOFF + k))
    for k in range(9):
        ins.append("v_cmp_gt_i32 vcc, 0, v%d" % (V_DCUR + k))
        ins.append("s_nop 1")
        ins.append("v_cndmask_b32 v%d, v%d, v%d, vcc" % (V_DCUR + k, V_DCUR + k, V_T))
    return ins

def xdma_list():
    g = []
    for k in range(8):
        grp = []
        if k == 0:
            grp.append("s_mov_b32 m0, s%d" % S_M0)
        else:
            grp.append("s_add_u32 m0, m0, 0x400")
        grp.append("s_nop 0")
        grp.append("buffer_load_dwordx4 v%d, s[%d:%d], s%d offen lds" % (V_DCUR + k, S_XSRD, S_XSRD + 3, S_XOFF))
        g.append(grp)
    grp = ["s_mov_b32 m0, s%d" % S_M0H,
           "s_mov_b64 exec, s[%d:%d]" % (S_HEXEC, S_HEXEC + 1),
           "buffer_load_dwordx4 v%d, s[%d:%d], s%d offen lds" % (V_DCUR + 8, S_XSRD, S_XSRD + 3, S_XOFF),
           "s_mov_b64 exec, -1"]
    g.append(grp)
    return g

def wload_list(st):
    g = []
    for tap in range(5):
        for nb in range(4):
            grp = ["buffer_load_dwordx4 %s, v%d, s[%d:%d], s%d offen offset:%d" %
                   (WREG(st, tap, nb), V_WOFF, S_WSRD, S_WSRD + 3, S_WOFF, nb * 1024)]
            if nb == 3:
                grp.append("s_add_u32 s%d, s%d, 0x1000" % (S_WOFF, S_WOFF))
            g.append(grp)
    return g

def chunk(first, last):
    steps = steps_natural()
    nsteps = len(steps)
    mf = []
    start = []
    for (ks, p, q) in steps:
        start.append(len(mf))
        n = len(start) - 1
        for i in range(5):
            j = q - i
            if j < 0 or j > 7: continue
            for nb in range(4):
                acc = ACCS(p, j, nb)
                csrc = "0" if (first and ks == 0 and i == 0) else acc
                mf.append("v_mfma_f32_16x16x32_bf16 %s, %s, %s, %s" % (acc, WREG(ks, i, nb), XREG(n % R), csrc))
    side = {k: [] for k in range(len(mf) + 1)}
    for n in range(nsteps):
        k = start[n]
        tgt = n + D
        if n == 0:
            side[k].append("s_waitcnt vmcnt(0)")
        if n == 24:
            side[k].append("s_waitcnt vmcnt(9)")
        if tgt == nsteps:
            side[k].append("s_waitcnt vmcnt(20) lgkmcnt(0)")
            side[k].append("s_barrier")
            for a in range(4):
                side[k].append("v_xor_b32 v%d, 0x%x, v%d" % (V_XA + a, SLOT_XOR, V_XA + a))
        else:
            side[k].append("s_waitcnt lgkmcnt(%d)" % (D - 1))
        side[k].append(xread(steps[tgt % nsteps], tgt % R))
    half = start[24]
    pos = 4
    if last:
        pass
    for grp in wload_list(1):
        side[pos] += grp; pos += 8
    if last:
        side[pos] += ["s_add_u32 s%d, s%d, 1" % (S_T0, S_MT)]
        side[pos] += ["s_cmp_eq_u32 s%d, 0" % S_TILE, "s_cselect_b32 s%d, s%d, 126" % (S_T0, S_T0)]
        side[pos] += tile_setup_load(False)
        side[pos] += ["s_mov_b32 s%d, 0" % S_XOFF, "s_nop 4"]
        pos += 2
    for grp in xdma_list():
        side[pos] += grp; pos += 8
    assert pos < half + 8
    side[pos - 8] += ["s_add_u32 s%d, s%d, 128" % (S_XOFF, S_XOFF),
                  "s_xor_b32 s%d, s%d, 0x%x" % (S_M0, S_M0, SLOT_XOR),
                  "s_xor_b32 s%d, s%d, 0x%x" % (S_M0H, S_M0H, SLOT_XOR)]
    pos = half + 4
    if last:
        side[pos] += ["s_mov_b32 s%d, s%d" % (S_WOFF, S_WBASE)]
    for grp in wload_list(0):
        side[pos] += grp; pos += 8
    assert pos - 8 < start[nsteps - D]
    for k in range(len(mf)):
        for s in side[k]: e(s)
        e(mf[k])

def epilogue():
    cm("epilogue")
    e("s_nop 15")
    t = V_T + 2
    for p in range(2):
        for j in range(8):
            fr = []; gr = []
            tt = t
            for nb in range(4):
                kind, b = ACC(p, j, nb)
                for r in range(4):
                    if kind == 'a':
                        e("v_accvgpr_read_b32 v%d, a%d" % (tt, b + r))
                        reg = tt; tt += 1
                    else:
                        reg = b + r
                    (fr if nb < 2 else gr).append(reg)
            E = [tt + k for k in range(8)]
            G = [tt + 8 + k for k in range(8)]
            for k in range(8):
                e("v_mul_f32 v%d, s%d, v%d" % (E[k], S_C1, fr[k]))
                e("v_mul_f32 v%d, s%d, v%d" % (G[k], S_C2, gr[k]))
            for k in range(8):
                e("v_min_f32 v%d, 0x41f00000, v%d" % (E[k], E[k]))
                e("v_exp_f32 v%d, v%d" % (G[k], G[k]))
            for k in range(8):
                e("v_exp_f32 v%d, v%d" % (E[k], E[k]))
            N = [tt + 16 + k for k in range(8)]
            assert N[-1] <= 71, N
            for k in range(8):
                e("v_add_f32 v%d, -1.0, v%d" % (N[k], E[k]))
                e("v_add_f32 v%d, 1.0, v%d" % (E[k], E[k]))
            for k in range(8):
                e("v_fma_f32 v%d, v%d, v%d, v%d" % (E[k], E[k], G[k], E[k]))
            for k in range(8):
                e("v_rcp_f32 v%d, v%d" % (E[k], E[k]))
            for k in range(8):
                e("v_mul_f32 v%d, v%d, v%d" % (N[k], N[k], E[k]))
            q0 = (G[0] + 3) // 4 * 4
            assert q0 + 3 <= G[7]
            for k in range(4):
                e("v_cvt_pk_bf16_f32 v%d, v%d, v%d" % (q0 + k, N[2 * k], N[2 * k + 1]))
            e("s_add_u32 s%d, s%d, %d" % (S_T0, S_OBASE, (p + 2 * j) * 1024))
            e("buffer_store_dwordx4 v[%d:%d], v%d, s[%d:%d], s%d offen" % (q0, q0 + 3, V_OOFF, S_OSRD, S_OSRD + 3, S_T0))
            e("s_nop 1")

def main_kernel():
    K = NAME + "_kernel"
    out.append(".globl " + K)
    out.append(".p2align 8")
    out.append(".type %s,@function" % K)
    lab(K)
    e("s_load_dwordx2 s[%d:%d], s[0:1], 0" % (S_XPTR, S_XPTR + 1))
    e("s_load_dwordx2 s[%d:%d], s[0:1], 16" % (S_OPTR, S_OPTR + 1))
    e("s_load_dwordx2 s[%d:%d], s[0:1], 32" % (S_WPTR, S_WPTR + 1))
    e("s_and_b32 s%d, s2, 7" % S_T0)
    e("s_lshr_b32 s%d, s2, 3" % (S_T0 + 1))
    e("s_and_b32 s%d, s%d, 3" % (S_NT, S_T0 + 1))
    e("s_lshr_b32 s%d, s%d, 2" % (S_T0 + 1, S_T0 + 1))
    e("s_lshl_b32 s%d, s%d, 3" % (S_T0 + 1, S_T0 + 1))
    e("s_add_u32 s%d, s%d, s%d" % (S_T0, S_T0, S_T0 + 1))
    e("s_cmp_ge_u32 s%d, 63" % S_T0)
    e("s_cbranch_scc1 L_done")
    e("s_lshl_b32 s%d, s%d, 1" % (S_MT, S_T0))
    e("v_lshrrev_b32 v%d, 6, v0" % V_T)
    e("v_and_b32 v%d, 63, v0" % (V_T + 1))
    e("s_nop 0")
    e("v_readfirstlane_b32 s%d, v%d" % (S_WAVE, V_T))
    L = V_T + 1
    e("v_lshlrev_b32 v%d, 4, v%d" % (V_WOFF, L))
    M = V_T + 2; KQ = V_T + 3; TMP = V_T + 4; TMP2 = V_T + 5; TMP3 = V_T + 6
    e("v_and_b32 v%d, 15, v%d" % (M, L))
    e("v_lshrrev_b32 v%d, 4, v%d" % (KQ, L))
    e("v_lshlrev_b32 v%d, 14, v%d" % (V_OOFF, M))
    e("v_lshl_add_u32 v%d, v%d, 4, v%d" % (V_OOFF, KQ, V_OOFF))
    for s in range(2):
        for ks in range(2):
            dst = V_XA + s * 2 + ks
            e("v_add_u32 v%d, %d, v%d" % (TMP, s, M))
            e("v_bfe_u32 v%d, v%d, 1, 3" % (TMP2, TMP))
            e("v_add_u32 v%d, %d, v%d" % (TMP3, 4 * ks, KQ))
            e("v_xor_b32 v%d, v%d, v%d" % (TMP2, TMP2, TMP3))
            e("v_lshlrev_b32 v%d, 4, v%d" % (TMP2, TMP2))
            e("v_lshl_add_u32 v%d, v%d, 7, v%d" % (dst, TMP, TMP2))
    SG = V_T + 2; PI = V_T + 3; C = V_T + 4; MP = V_T + 5; F = V_T + 6; SG0 = V_T + 7
    e("v_lshrrev_b32 v%d, 3, v%d" % (SG0, L))
    e("v_and_b32 v%d, 7, v%d" % (PI, L))
    e("s_lshl_b32 s%d, s%d, 6" % (S_T0, S_WAVE))
    e("s_lshr_b32 s%d, s%d, 1" % (S_T0 + 1, S_WAVE))
    e("s_lshl_b32 s%d, s%d, 3" % (S_T0 + 1, S_T0 + 1))
    e("s_add_u32 s%d, s%d, 256" % (S_T0 + 1, S_T0 + 1))
    for k in range(9):
        if k < 8:
            e("v_add_u32 v%d, s%d, v%d" % (SG, S_T0, SG0))
            e("s_add_u32 s%d, s%d, 8" % (S_T0, S_T0))
        else:
            e("v_add_u32 v%d, s%d, v%d" % (SG, S_T0 + 1, SG0))
        e("v_mul_u32_u24 v%d, 241, v%d" % (C, SG))
        e("v_lshrrev_b32 v%d, 12, v%d" % (C, C))
        e("v_mul_u32_u24 v%d, 17, v%d" % (MP, C))
        e("v_sub_u32 v%d, v%d, v%d" % (MP, SG, MP))
        e("v_bfe_u32 v%d, v%d, 1, 3" % (F, MP))
        e("v_xor_b32 v%d, v%d, v%d" % (F, F, PI))
        e("v_lshl_add_u32 v%d, v%d, 4, v%d" % (C, MP, C))
        e("v_lshlrev_b32 v%d, 4, v%d" % (F, F))
        e("v_lshl_add_u32 v%d, v%d, 10, v%d" % (V_DOFF + k, C, F))
    e("v_mov_b32 v%d, 0x7f000000" % V_T)
    e("s_lshl_b32 s%d, s%d, 13" % (S_M0, S_WAVE))
    e("s_lshr_b32 s%d, s%d, 1" % (S_M0H, S_WAVE))
    e("s_lshl_b32 s%d, s%d, 10" % (S_M0H, S_M0H))
    e("s_add_u32 s%d, s%d, 0x8000" % (S_M0H, S_M0H))
    e("s_and_b32 s%d, s%d, 1" % (S_T0, S_WAVE))
    e("s_cmp_eq_u32 s%d, 0" % S_T0)
    e("s_cselect_b32 s%d, -1, 0" % S_HEXEC)
    e("s_cselect_b32 s%d, 0, -1" % (S_HEXEC + 1))
    e("s_lshl_b32 s%d, s%d, 2" % (S_T0, S_NT))
    e("s_add_u32 s%d, s%d, s%d" % (S_T0, S_T0, S_WAVE))
    e("s_mul_i32 s%d, s%d, 327680" % (S_WBASE, S_T0))
    e("s_mov_b32 s%d, s%d" % (S_WOFF, S_WBASE))
    e("s_lshl_b32 s%d, s%d, 6" % (S_OCOL, S_T0))
    e("s_mov_b32 s%d, 0x4038aa3b" % S_C1)
    e("s_mov_b32 s%d, 0xbfb8aa3b" % S_C2)
    e("s_mov_b32 s%d, 0" % S_XOFF)
    e("s_mov_b32 s%d, 0" % S_TILE)
    e("s_waitcnt lgkmcnt(0)")
    e("s_mov_b32 s%d, s%d" % (S_WSRD, S_WPTR))
    e("s_mov_b32 s%d, s%d" % (S_WSRD + 1, S_WPTR + 1))
    e("s_mov_b32 s%d, %d" % (S_WSRD + 2, WPB))
    e("s_mov_b32 s%d, 0x20000" % (S_WSRD + 3))
    e("s_mov_b32 s%d, 0x20000" % (S_XSRD + 3))
    e("s_mov_b32 s%d, 0x20000" % (S_OSRD + 3))
    e("s_mov_b32 s%d, %d" % (S_OSRD + 2, BATCHB))
    e("s_mov_b32 s%d, s%d" % (S_T0, S_MT))
    for s in tile_setup_load(True): e(s)
    e("s_nop 4")
    for grp in xdma_list():
        for s in grp: e(s)
    e("s_add_u32 s%d, s%d, 128" % (S_XOFF, S_XOFF))
    e("s_xor_b32 s%d, s%d, 0x%x" % (S_M0, S_M0, SLOT_XOR))
    e("s_xor_b32 s%d, s%d, 0x%x" % (S_M0H, S_M0H, SLOT_XOR))
    for grp in wload_list(0):
        for s in grp: e(s)
    e("s_waitcnt vmcnt(20)")
    e("s_barrier")
    steps = steps_natural()
    for n in range(D):
        e(xread(steps[n], n % R))
    lab("L_tile")
    e("s_cmp_ge_u32 s%d, 63" % S_MT)
    e("s_cselect_b32 s%d, 63, 0" % (S_T0 + 1))
    e("s_cselect_b32 s%d, %d, 0" % (S_T0 + 2, BATCHB))
    e("s_sub_u32 s%d, s%d, s%d" % (S_T0 + 1, S_MT, S_T0 + 1))
    e("s_add_u32 s%d, s%d, s%d" % (S_OSRD, S_OPTR, S_T0 + 2))
    e("s_addc_u32 s%d, s%d, 0" % (S_OSRD + 1, S_OPTR + 1))
    e("s_lshl_b32 s%d, s%d, 18" % (S_OBASE, S_T0 + 1))
    e("s_add_u32 s%d, s%d, s%d" % (S_OBASE, S_OBASE, S_OCOL))
    cm("chunk 0")
    chunk(True, False)
    e("s_mov_b32 s%d, 6" % S_CNT)
    out.append(".p2align 6")
    lab("L_mid")
    chunk(False, False)
    e("s_sub_u32 s%d, s%d, 1" % (S_CNT, S_CNT))
    e("s_cmp_lg_u32 s%d, 0" % S_CNT)
    e("s_cbranch_scc1 L_mid")
    cm("chunk 7")
    chunk(False, True)
    epilogue()
    e("s_add_u32 s%d, s%d, 1" % (S_MT, S_MT))
    e("s_add_u32 s%d, s%d, 1" % (S_TILE, S_TILE))
    e("s_cmp_lt_u32 s%d, 2" % S_TILE)
    e("s_cbranch_scc1 L_tile")
    e("s_waitcnt vmcnt(0) lgkmcnt(0)")
    lab("L_done")
    e("s_endpgm")

def prep_kernel():
    K = "wprep_kernel"
    out.append(".globl " + K)
    out.append(".p2align 8")
    out.append(".type %s,@function" % K)
    lab(K)
    e("s_cmp_ge_u32 s2, 160")
    e("s_cbranch_scc1 L_pdone")
    e("s_load_dwordx2 s[4:5], s[0:1], 8")
    e("s_load_dwordx2 s[8:9], s[0:1], 32")
    e("s_lshl_b32 s3, s2, 8")
    e("v_add_u32 v0, s3, v0")
    e("v_and_b32 v1, 127, v0")
    e("v_lshrrev_b32 v2, 7, v0")
    e("v_lshlrev_b32 v3, 14, v2")
    e("v_lshl_add_u32 v3, v1, 4, v3")
    e("v_add_u32 v4, 0x1000, v3")
    e("v_add_u32 v5, 0x2000, v3")
    e("v_add_u32 v6, 0x3000, v3")
    e("s_mov_b32 s6, %d" % WPB)
    e("s_mov_b32 s7, 0x20000")
    e("s_mov_b32 s10, %d" % WPB)
    e("s_mov_b32 s11, 0x20000")
    e("s_waitcnt lgkmcnt(0)")
    for jj in range(8):
        e("buffer_load_dwordx4 v[%d:%d], v%d, s[4:7], 0 offen offset:%d" % (16 + jj * 4, 19 + jj * 4, 3 + jj // 2, (jj & 1) * 2048))
    e("v_lshrrev_b32 v7, 6, v1")
    e("v_and_b32 v8, 63, v1")
    e("v_lshrrev_b32 v9, 2, v8")
    e("s_mov_b32 s12, 327680")
    e("v_mul_lo_u32 v9, v9, s12")
    e("v_and_b32 v8, 3, v8")
    e("v_lshl_add_u32 v9, v8, 6, v9")
    e("v_lshl_add_u32 v9, v7, 11, v9")
    e("v_lshrrev_b32 v10, 6, v2")
    e("v_lshl_add_u32 v9, v10, 12, v9")
    e("v_and_b32 v10, 63, v2")
    e("v_and_b32 v11, 3, v10")
    e("v_lshl_add_u32 v9, v11, 8, v9")
    e("v_lshrrev_b32 v10, 2, v10")
    e("v_mul_u32_u24 v10, 20480, v10")
    e("v_add_u32 v9, v9, v10")
    e("s_mov_b32 s13, 0x05040100")
    e("s_mov_b32 s14, 0x07060302")
    e("s_waitcnt vmcnt(0)")
    for ee in range(8):
        dst = 48 + ee * 4
        for kp in range(4):
            lo = 16 + (2 * kp) * 4 + (ee >> 1)
            hi = 16 + (2 * kp + 1) * 4 + (ee >> 1)
            e("v_perm_b32 v%d, v%d, v%d, s%d" % (dst + kp, hi, lo, 13 + (ee & 1)))
        e("buffer_store_dwordx4 v[%d:%d], v9, s[8:11], 0 offen offset:%d" % (dst, dst + 3, (ee >> 2) * 1024 + (ee & 3) * 16))
    e("s_waitcnt vmcnt(0)")
    lab("L_pdone")
    e("s_endpgm")

def kd(name, vgpr, sgpr, acc):
    out.append(".p2align 6")
    out.append(".amdhsa_kernel " + name)
    out.append("  .amdhsa_next_free_vgpr %d" % vgpr)
    out.append("  .amdhsa_next_free_sgpr %d" % sgpr)
    out.append("  .amdhsa_accum_offset %d" % acc)
    out.append("  .amdhsa_group_segment_fixed_size 0")
    out.append("  .amdhsa_kernarg_size 40")
    out.append("  .amdhsa_user_sgpr_count 2")
    out.append("  .amdhsa_user_sgpr_kernarg_segment_ptr 1")
    out.append("  .amdhsa_system_sgpr_workgroup_id_x 1")
    out.append(".end_amdhsa_kernel")

hdr = open("cdna_kernels/%s.s.ref" % NAME).read().split("\n")
for l in hdr:
    if l.startswith(";") and "@launch" not in l and "Override" not in l and "grid=ceil" not in l:
        out.append(l)
out.append("; @launch kernel=wprep_kernel grid=(160,1,1) block=(256,1,1) lds=0")
out.append("; @launch kernel=%s_kernel grid=(256,1,1) block=(256,1,1) lds=%d" % (NAME, LDS_BYTES))
out.append('.amdgcn_target "amdgcn-amd-amdhsa--gfx950"')
out.append(".text")
main_kernel()
prep_kernel()
out.append('.section .rodata,"a"')
kd(NAME + "_kernel", 512, 96, 256)
kd("wprep_kernel", 80, 24, 80)
for s in range(272):
    assert (s * 241) >> 12 == s // 17
dst = sys.argv[1] if len(sys.argv) > 1 else "cdna_kernels/%s.s" % NAME
open(dst, "w").write("\n".join(out) + "\n")
print("wrote", dst, len(out), "lines")
```

```python
import sys, os, re

NAME = "standalone__autoregressive_conv_wavernn__speech"
T = 16000
BATCHB = T * 1024
WPB = 5 * 512 * 1024 * 2
SLOT_XOR = 0x10000
CLS = 17 * 128
LDS_BYTES = 0x10000 + 34816
STAMP = os.environ.get("STAMP") is not None
OVERLAP = os.environ.get("NOOVL") is None
MAPPING = int(os.environ.get("MAPPING", "0"))
CAP = int(os.environ.get("CAP", "8"))
ORDER = os.environ.get("ORDER", "Bz")
VSPACE = int(os.environ.get("VSPACE", "4"))

out = []
def e(s): out.append("    " + s)
def lab(s): out.append(s + ":")
def cm(s): out.append("    ; " + s)

def WREGN(st, tap, nb): return st * 80 + (tap * 4 + nb) * 4
def WREG(st, tap, nb):
    b = WREGN(st, tap, nb); return "a[%d:%d]" % (b, b + 3)
def XREG(q):
    b = 160 + q * 4; return "a[%d:%d]" % (b, b + 3)
NVACC = 52
def ACC(p, j, nb):
    idx = (p * 8 + j) * 4 + nb
    if idx < NVACC: return ('v', 48 + idx * 4)
    return ('a', 208 + (idx - NVACC) * 4)
def ACCS(p, j, nb):
    k, b = ACC(p, j, nb); return "%s[%d:%d]" % (k, b, b + 3)

V_XA = 1
V_WOFF = 5
V_OOFF = 6
V_DCUR = 7
V_T = 16
S_XSRD = 4; S_WSRD = 8; S_OSRD = 12
S_XPTR = 16; S_OPTR = 18; S_WPTR = 20
S_WAVE = 22; S_MT = 23; S_NT = 24
S_M0 = 26; S_M0H = 27; S_WOFF = 28; S_WBASE = 29; S_CNT = 30
S_HEXEC = 32
S_T0 = 34
S_OBASE = 40; S_TILE = 41; S_C1 = 42; S_C2 = 43; S_TB = 44; S_OCOL = 45; S_ST = 46
S_SSRD = 48; S_SOFF = 52

_stn = [0]
def stamp():
    if not STAMP: return
    _stn[0] += 1
    e("s_memtime s[56:57]"); e("s_memrealtime s[58:59]"); e("s_waitcnt lgkmcnt(0)")
    e("s_cmp_lg_u32 s%d, 0" % S_WAVE)
    e("s_cbranch_scc1 L_st%d" % _stn[0])
    for k in range(4): e("v_mov_b32 v%d, s%d" % (44 + k, 56 + k))
    e("s_mov_b64 exec, 1")
    e("buffer_store_dwordx4 v[44:47], off, s[%d:%d], s%d" % (S_SSRD, S_SSRD + 3, S_SOFF))
    e("s_mov_b64 exec, -1"); e("s_nop 1")
    lab("L_st%d" % _stn[0])
    e("s_add_u32 s%d, s%d, 16" % (S_SOFF, S_SOFF))

NAT = [(0, 0), (0, 1), (1, 0), (1, 1)]
REO = [(0, 0), (1, 0), (0, 1), (1, 1)]
PRE = 6

def xread(ks, p, q):
    s = 1 if q >= 8 else 0
    c = (p + 2 * q) % 16
    return "ds_read_b128 %s, v%d offset:%d" % (XREG(q), V_XA + s * 2 + ks, c * CLS)

def cost(ins):
    op = ins.split()[0]
    if op in ("v_exp_f32", "v_rcp_f32"): return 8
    return 4

def xsrd_tile_ins(first):
    ins = []
    ins.append("s_cmp_ge_u32 s%d, 63" % S_T0)
    ins.append("s_cselect_b32 s%d, 63, 0" % (S_T0 + 1))
    ins.append("s_cselect_b32 s%d, %d, 0" % (S_T0 + 2, BATCHB))
    ins.append("s_sub_u32 s%d, s%d, s%d" % (S_T0 + 1, S_T0, S_T0 + 1))
    ins.append("s_add_u32 s%d, s%d, s%d" % (S_XSRD, S_XPTR, S_T0 + 2))
    ins.append("s_addc_u32 s%d, s%d, 0" % (S_XSRD + 1, S_XPTR + 1))
    ins.append("s_cmp_lt_u32 s%d, 126" % S_T0)
    ins.append("s_cselect_b32 s%d, %d, 0" % (S_XSRD + 2, BATCHB))
    ins.append("s_lshl_b32 s%d, s%d, 18" % (S_T0 + 1, S_T0 + 1))
    ins.append("s_sub_u32 s%d, s%d, s%d" % (S_T0 + 2, S_T0 + 1, S_TB))
    ins.append("s_mov_b32 s%d, s%d" % (S_TB, S_T0 + 1))
    for k in range(9):
        ins.append("v_add_u32 v%d, s%d, v%d" % (V_DCUR + k, S_T0 + 2, V_DCUR + k))
    return ins

def xdma_groups():
    g = []
    for k in range(8):
        g.append([("s_mov_b32 m0, s%d" % S_M0) if k == 0 else "s_add_u32 m0, m0, 0x400",
                  None,
                  "buffer_load_dwordx4 v%d, s[%d:%d], 0 offen nt lds" % (V_DCUR + k, S_XSRD, S_XSRD + 3)])
    g.append(["s_mov_b32 m0, s%d" % S_M0H,
              None,
              ("s_mov_b64 exec, s[%d:%d]" % (S_HEXEC, S_HEXEC + 1),
               "buffer_load_dwordx4 v%d, s[%d:%d], 0 offen nt lds" % (V_DCUR + 8, S_XSRD, S_XSRD + 3),
               "s_mov_b64 exec, -1")])
    return g
XDMA_POST = ["s_add_u32 s%d, s%d, 128" % (S_XSRD, S_XSRD),
             "s_addc_u32 s%d, s%d, 0" % (S_XSRD + 1, S_XSRD + 1),
             "s_xor_b32 s%d, s%d, 0x%x" % (S_M0, S_M0, SLOT_XOR),
             "s_xor_b32 s%d, s%d, 0x%x" % (S_M0H, S_M0H, SLOT_XOR)]

def wload(st, tap, nb):
    return "buffer_load_dwordx4 %s, v%d, s[%d:%d], s%d offen offset:%d" % (
        WREG(st, tap, nb), V_WOFF, S_WSRD, S_WSRD + 3, S_WOFF, nb * 1024)
WADV = "s_add_u32 s%d, s%d, 0x1000" % (S_WOFF, S_WOFF)

def epi_block(p, j, tb):
    sl = []
    regs = {}
    for nb in range(4):
        k, b = ACC(p, j, nb)
        for r in range(4): regs[(nb, r)] = (k, b + r)
    PK = tb
    assert PK % 4 == 0
    for h in range(2):
        E = [tb + 4 + h * 8 + k for k in range(4)]
        G = [tb + 8 + h * 8 + k for k in range(4)]
        src = {}
        rd = []
        for k in range(4):
            kind, r = regs[(h, k)]
            if kind == 'a':
                rd.append("v_accvgpr_read_b32 v%d, a%d" % (E[k], r)); r = E[k]
            src[('e', k)] = r
            kind, r = regs[(2 + h, k)]
            if kind == 'a':
                rd.append("v_accvgpr_read_b32 v%d, a%d" % (G[k], r)); r = G[k]
            src[('g', k)] = r
        for i in range(0, len(rd), 2): sl.append(tuple(rd[i:i + 2]))
        mulE = ["v_mul_f32 v%d, s%d, v%d" % (E[k], S_C1, src[('e', k)]) for k in range(4)]
        mulG = ["v_mul_f32 v%d, s%d, v%d" % (G[k], S_C2, src[('g', k)]) for k in range(4)]
        mn = ["v_min_f32 v%d, 0x41f00000, v%d" % (E[k], E[k]) for k in range(4)]
        eG = ["v_exp_f32 v%d, v%d" % (G[k], G[k]) for k in range(4)]
        eE = ["v_exp_f32 v%d, v%d" % (E[k], E[k]) for k in range(4)]
        aG = ["v_add_f32 v%d, 1.0, v%d" % (G[k], G[k]) for k in range(4)]
        den = ["v_fma_f32 v%d, v%d, v%d, v%d" % (G[k], E[k], G[k], G[k]) for k in range(4)]
        rc = ["v_rcp_f32 v%d, v%d" % (G[k], G[k]) for k in range(4)]
        fin = ["v_fma_f32 v%d, v%d, v%d, -v%d" % (E[k], E[k], G[k], G[k]) for k in range(4)]
        cv = ["v_cvt_pk_bf16_f32 v%d, v%d, v%d" % (PK + 2 * h + k, E[2 * k], E[2 * k + 1]) for k in range(2)]
        sl += [(mulG[0], mulG[1]), (mulG[2], mulG[3]), (mulE[0], mulE[1]), (eG[0],), (mulE[2], mulE[3]), (eG[1],),
               (mn[0], mn[1]), (eG[2],), (mn[2], mn[3]), (eG[3],), (eE[0],), (aG[0], aG[1]), (eE[1],), (aG[2], aG[3]),
               (eE[2],), (eE[3],), (den[0], den[1]), (den[2], den[3]), (rc[0],), (rc[1],), (rc[2],), (rc[3],),
               (fin[0], fin[1]), (fin[2], fin[3]), (cv[0], cv[1])]
    sl.append(("s_add_u32 s%d, s%d, %d" % (S_ST, S_OBASE, (p + 2 * j) * 1024),
               "buffer_store_dwordx4 v[%d:%d], v%d, s[%d:%d], s%d offen" % (PK, PK + 3, V_OOFF, S_OSRD, S_OSRD + 3, S_ST)))
    return sl
EPI_TB = V_T

def acc_reads(ins):
    m = re.match(r"v_accvgpr_read_b32 v\d+, a(\d+)", ins)
    if m: return ('a', int(m.group(1)))
    m = re.match(r"v_mul_f32 v\d+, s\d+, v(\d+)", ins)
    if m and int(m.group(1)) >= 48: return ('v', int(m.group(1)))
    return None

def chunk(order, first=False, last=False, epi=None):
    mf = []; xuse = {}; wuse = {}; accw = {}
    seen = set()
    for g, (ks, p) in enumerate(order):
        for j in range(8):
            nbs = [0, 1, 2, 3] if (j % 2 == 0 or ORDER != "Bz") else [3, 2, 1, 0]
            for ci, nb in enumerate(nbs):
                taps = list(range(5)) if (ci % 2 == 0 or ORDER != "Bz") else list(range(4, -1, -1))
                for i in taps:
                    acc = ACCS(p, j, nb)
                    csrc = acc
                    if first and (p, j, nb) not in seen: csrc = "0"
                    seen.add((p, j, nb))
                    idx = len(mf)
                    mf.append("v_mfma_f32_16x16x32_bf16 %s, %s, %s, %s" % (acc, WREG(ks, i, nb), XREG(j + i), csrc))
                    xuse.setdefault((g, j + i), []).append(idx)
                    wuse.setdefault((ks, i, nb), []).append(idx)
                    accw.setdefault((p, j, nb), []).append(idx)
    NM = len(mf)
    gaps = [[] for _ in range(NM + 1)]
    used = [0] * (NM + 1)
    def put(k, ins):
        gaps[k].append(ins); used[k] += cost(ins)
    def place(k, ins, cap=8):
        tup = ins if isinstance(ins, tuple) else (ins,)
        c = sum(cost(x) for x in tup)
        while used[k] + c > max(cap, c): k += 1
        for x in tup: put(k, x)
        return k
    lds_ops = []
    order_x = [(g, q) for g in range(4) for q in range(12)]
    prev_k = 0
    xr_at = {}
    for (g, q) in order_x:
        if g == 0 and q < PRE: continue
        earliest = (max(xuse[(g - 1, q)]) + 1) if g > 0 else 0
        fu = min(xuse[(g, q)])
        k = max(earliest, prev_k, fu - 60)
        k = place(k, xread(order[g][0], order[g][1], q))
        assert k < fu - 5, (g, q, k, fu)
        xr_at[(g, q)] = k; prev_k = k
    last_read = prev_k
    kb = max(last_read + 8, max(xuse[(3, 0)]) + 1)
    bar_gap = kb
    nxt = []
    kk = kb + 1
    for a in range(4):
        kk = place(kk, "v_xor_b32 v%d, 0x%x, v%d" % (V_XA + a, SLOT_XOR, V_XA + a))
    for q in range(PRE):
        earliest = max(xuse[(3, q)]) + 1
        kk = place(max(kk, earliest), xread(0, 0, q))
        xr_at[(4, q)] = kk
    assert kk <= NM - 8, kk
    vm_list = []
    def sched_w(st, start, reset):
        k = start
        if reset: k = place(k, "s_mov_b32 s%d, s%d" % (S_WOFF, S_WBASE))
        for tap in range(5):
            for nb in range(4):
                k = place(k, wload(st, tap, nb)); vm_list.append((k, ('w', st, tap, nb)))
                if nb == 3: place(k + 1, WADV)
                k += VSPACE
        return k
    k = sched_w(1, 2, False)
    if last:
        pre = ["s_add_u32 s%d, s%d, 1" % (S_T0, S_MT), "s_cmp_eq_u32 s%d, 0" % S_TILE,
               "s_cselect_b32 s%d, s%d, 126" % (S_T0, S_T0)] + xsrd_tile_ins(False)
        seq = []
        i = 0
        while i < len(pre):
            if pre[i].startswith("s_cmp") :
                t = [pre[i]]; i += 1
                while i < len(pre) and pre[i].startswith("s_cselect"): t.append(pre[i]); i += 1
                seq.append(tuple(t))
            elif pre[i].startswith("s_add_u32") and i + 1 < len(pre) and pre[i + 1].startswith("s_addc"):
                seq.append((pre[i], pre[i + 1])); i += 2
            else:
                seq.append(pre[i]); i += 1
        for s in seq: k = place(k, s)
        k += 2
    for grp in xdma_groups():
        k = place(k, grp[0])
        k = place(k + 1, grp[2]); vm_list.append((k, ('x',)))
        k += VSPACE - 1
    k = place(k, (XDMA_POST[0], XDMA_POST[1])); k = place(k, XDMA_POST[2]); k = place(k, XDMA_POST[3])
    st0_end = max(max(v) for (ks, i, nb), v in wuse.items() if ks == 0) + 1
    k = sched_w(0, max(k, st0_end + 1), last)
    assert k < NM - 40, k
    if epi:
        import copy
        base_gaps = copy.deepcopy(gaps); base_used = list(used); base_vm = list(vm_list)
        done = False
        for num in range(0, 33):
            gaps[:] = copy.deepcopy(base_gaps); used[:] = base_used
            capf = lambda k: (CAP + 4) if ((k * num) % 16 < num and num <= 16) else ((CAP + 8) if num > 16 and ((k * (num - 16)) % 16 < (num - 16)) else (CAP + 4 if num > 16 else CAP))
            k = 0; ok = True
            for bi, (which, p, j) in enumerate(epi):
                if which == 'own':
                    k = max(k, max(max(accw[(p, j, nb)]) for nb in range(4)) + 9)
                for slot in epi_block(p, j, EPI_TB + (bi % 2) * 0):
                    for ins in slot:
                        c = cost(ins)
                        while k < NM and used[k] + c > capf(k): k += 1
                        if k >= NM - 3: ok = False; break
                        put(k, ins)
                        ar = acc_reads(ins)
                        if which == 'prev' and ar is not None:
                            for nb in range(4):
                                kind, b = ACC(p, j, nb)
                                if kind == ar[0] and b <= ar[1] < b + 4 and k > min(accw[(p, j, nb)]): ok = False
                    if not ok: break
                if not ok: break
            if ok:
                sys.stderr.write("epilogue fill: num=%d ends at gap %d\n" % (num, k)); done = True; break
        assert done
    seq = []
    for k in range(NM + 1):
        for ins in gaps[k]: seq.append(('i', k, ins))
        if k < NM: seq.append(('m', k, mf[k]))
    final = []
    lds_q = [('x', 0, q) for q in range(PRE)]
    vm_q = []
    xtag = {}
    def is_lds(ins): return ins.startswith("ds_read")
    def is_vm(ins): return ins.startswith("buffer_")
    xr_rev = {}
    for tag, k in xr_at.items(): xr_rev.setdefault(k, []).append(tag)
    first_x = {min(v): tag for tag, v in xuse.items()}
    first_w = {}
    for tag, v in wuse.items():
        if tag[0] == 1: first_w[min(v)] = tag
    cnt_in_gap = {}
    for (kind, k, ins) in seq:
        if kind == 'i':
            if k == bar_gap and cnt_in_gap.get(k, 0) == 0:
                pass
            cnt_in_gap[k] = cnt_in_gap.get(k, 0) + 1
            if is_lds(ins):
                tag = xr_rev[k].pop(0)
                lds_q.append(('x',) + tag)
            if is_vm(ins):
                m = re.match(r"buffer_load_dwordx4 a\[(\d+):", ins)
                if m:
                    b = int(m.group(1)); vm_q.append(('w', b // 80, (b % 80) // 16, (b % 16) // 4))
                elif ins.endswith("lds"): vm_q.append(('x',))
                else: vm_q.append(('st',))
            final.append(ins)
        else:
            w = []
            if k == bar_gap:
                idx = max(i for i, t in enumerate(vm_q) if t == ('x',))
                n = len(vm_q) - 1 - idx
                final.append("s_waitcnt vmcnt(%d) lgkmcnt(0)" % n)
                final.append("s_barrier")
                vm_q = vm_q[idx + 1:]; lds_q = []
            if k in first_x:
                t = ('x',) + first_x[k]
                if t in lds_q:
                    idx = lds_q.index(t)
                    w.append("lgkmcnt(%d)" % (len(lds_q) - 1 - idx)); lds_q = lds_q[idx + 1:]
            if k in first_w:
                t = ('w',) + first_w[k]
                if t in vm_q:
                    idx = max(i for i, u in enumerate(vm_q) if u[:2] == ('w', 1))
                    w.append("vmcnt(%d)" % (len(vm_q) - 1 - idx)); vm_q = vm_q[idx + 1:]
            if k == NM - 2:
                idxs = [i for i, u in enumerate(vm_q) if u[:2] == ('w', 0)]
                if idxs:
                    idx = max(idxs)
                    w.append("vmcnt(%d)" % (len(vm_q) - 1 - idx)); vm_q = vm_q[idx + 1:]
            if w: final.append("s_waitcnt " + " ".join(w))
            final.append(ins)
    for ins in final: e(ins)

def epilogue_tail(blocks):
    cm("exposed epilogue")
    e("s_nop 7")
    for n, (p, j) in enumerate(blocks):
        for slot in epi_block(p, j, EPI_TB):
            for ins in slot: e(ins)
        e("s_nop 1")

def out_tile_ins():
    e("s_cmp_ge_u32 s%d, 63" % S_MT)
    e("s_cselect_b32 s%d, 63, 0" % (S_T0 + 1))
    e("s_cselect_b32 s%d, %d, 0" % (S_T0 + 2, BATCHB))
    e("s_sub_u32 s%d, s%d, s%d" % (S_T0 + 1, S_MT, S_T0 + 1))
    e("s_add_u32 s%d, s%d, s%d" % (S_OSRD, S_OPTR, S_T0 + 2))
    e("s_addc_u32 s%d, s%d, 0" % (S_OSRD + 1, S_OPTR + 1))
    e("s_lshl_b32 s%d, s%d, 18" % (S_OBASE, S_T0 + 1))
    e("s_add_u32 s%d, s%d, s%d" % (S_OBASE, S_OBASE, S_OCOL))

def main_kernel():
    K = NAME + "_kernel"
    out.append(".globl " + K); out.append(".p2align 8"); out.append(".type %s,@function" % K)
    lab(K)
    e("s_load_dwordx2 s[%d:%d], s[0:1], 0" % (S_XPTR, S_XPTR + 1))
    e("s_load_dwordx2 s[%d:%d], s[0:1], 16" % (S_OPTR, S_OPTR + 1))
    e("s_load_dwordx2 s[%d:%d], s[0:1], 32" % (S_WPTR, S_WPTR + 1))
    e("s_cmp_ge_u32 s2, 256")
    e("s_cbranch_scc1 L_done")
    e("s_and_b32 s%d, s2, 7" % S_T0)
    e("s_lshr_b32 s%d, s2, 3" % (S_T0 + 1))
    if MAPPING == 0:
        e("s_and_b32 s%d, s%d, 3" % (S_NT, S_T0 + 1))
        e("s_lshr_b32 s%d, s%d, 2" % (S_T0 + 1, S_T0 + 1))
        e("s_lshl_b32 s%d, s%d, 3" % (S_T0 + 1, S_T0 + 1))
        e("s_add_u32 s%d, s%d, s%d" % (S_T0, S_T0, S_T0 + 1))
    elif MAPPING == 1:
        e("s_and_b32 s%d, s%d, 3" % (S_NT, S_T0))
        e("s_lshr_b32 s%d, s%d, 2" % (S_T0, S_T0))
        e("s_lshl_b32 s%d, s%d, 1" % (S_T0 + 1, S_T0 + 1))
        e("s_add_u32 s%d, s%d, s%d" % (S_T0, S_T0, S_T0 + 1))
    elif MAPPING == 2:
        e("s_and_b32 s%d, s%d, 1" % (S_NT, S_T0))
        e("s_lshl_b32 s%d, s%d, 1" % (S_NT, S_NT))
        e("s_and_b32 s%d, s%d, 1" % (S_T0 + 2, S_T0 + 1))
        e("s_add_u32 s%d, s%d, s%d" % (S_NT, S_NT, S_T0 + 2))
        e("s_lshr_b32 s%d, s%d, 1" % (S_T0, S_T0))
        e("s_lshr_b32 s%d, s%d, 1" % (S_T0 + 1, S_T0 + 1))
        e("s_lshl_b32 s%d, s%d, 2" % (S_T0 + 1, S_T0 + 1))
        e("s_add_u32 s%d, s%d, s%d" % (S_T0, S_T0, S_T0 + 1))
    e("s_cmp_ge_u32 s%d, 63" % S_T0)
    e("s_cbranch_scc1 L_done")
    e("s_lshl_b32 s%d, s%d, 1" % (S_MT, S_T0))
    e("v_lshrrev_b32 v%d, 6, v0" % V_T)
    e("v_and_b32 v%d, 63, v0" % (V_T + 1))
    e("s_nop 0")
    e("v_readfirstlane_b32 s%d, v%d" % (S_WAVE, V_T))
    L = V_T + 1
    SG = V_T + 2; PI = V_T + 3; C = V_T + 4; MP = V_T + 5; F = V_T + 6; SG0 = V_T + 7
    e("v_lshrrev_b32 v%d, 3, v%d" % (SG0, L))
    e("v_and_b32 v%d, 7, v%d" % (PI, L))
    e("s_lshl_b32 s%d, s%d, 6" % (S_T0, S_WAVE))
    e("s_lshr_b32 s%d, s%d, 1" % (S_T0 + 1, S_WAVE))
    e("s_lshl_b32 s%d, s%d, 3" % (S_T0 + 1, S_T0 + 1))
    e("s_add_u32 s%d, s%d, 256" % (S_T0 + 1, S_T0 + 1))
    for k in range(9):
        if k < 8:
            e("v_add_u32 v%d, s%d, v%d" % (SG, S_T0, SG0))
            e("s_add_u32 s%d, s%d, 8" % (S_T0, S_T0))
        else:
            e("v_add_u32 v%d, s%d, v%d" % (SG, S_T0 + 1, SG0))
        e("v_mul_u32_u24 v%d, 241, v%d" % (C, SG))
        e("v_lshrrev_b32 v%d, 12, v%d" % (C, C))
        e("v_mul_u32_u24 v%d, 17, v%d" % (MP, C))
        e("v_sub_u32 v%d, v%d, v%d" % (MP, SG, MP))
        e("v_bfe_u32 v%d, v%d, 1, 3" % (F, MP))
        e("v_xor_b32 v%d, v%d, v%d" % (F, F, PI))
        e("v_lshl_add_u32 v%d, v%d, 4, v%d" % (C, MP, C))
        e("v_lshlrev_b32 v%d, 4, v%d" % (F, F))
        e("v_lshl_add_u32 v%d, v%d, 10, v%d" % (V_DCUR + k, C, F))
        e("v_add_u32 v%d, 0xffffe000, v%d" % (V_DCUR + k, V_DCUR + k))
    e("s_mov_b32 s%d, 0" % S_TB)
    e("s_lshl_b32 s%d, s%d, 13" % (S_M0, S_WAVE))
    e("s_lshr_b32 s%d, s%d, 1" % (S_M0H, S_WAVE))
    e("s_lshl_b32 s%d, s%d, 10" % (S_M0H, S_M0H))
    e("s_add_u32 s%d, s%d, 0x8000" % (S_M0H, S_M0H))
    e("s_and_b32 s%d, s%d, 1" % (S_T0, S_WAVE))
    e("s_cmp_eq_u32 s%d, 0" % S_T0)
    e("s_cselect_b32 s%d, -1, 0" % S_HEXEC)
    e("s_cselect_b32 s%d, 0, -1" % (S_HEXEC + 1))
    e("s_lshl_b32 s%d, s%d, 2" % (S_T0, S_NT))
    e("s_add_u32 s%d, s%d, s%d" % (S_T0, S_T0, S_WAVE))
    e("s_mul_i32 s%d, s%d, 327680" % (S_WBASE, S_T0))
    e("s_mov_b32 s%d, s%d" % (S_WOFF, S_WBASE))
    e("s_lshl_b32 s%d, s%d, 6" % (S_OCOL, S_T0))
    e("v_lshlrev_b32 v%d, 4, v%d" % (V_WOFF, L))
    e("s_mov_b32 s%d, 0x20000" % (S_XSRD + 3))
    e("s_mov_b32 s%d, %d" % (S_WSRD + 2, WPB))
    e("s_mov_b32 s%d, 0x20000" % (S_WSRD + 3))
    e("s_waitcnt lgkmcnt(0)")
    e("s_mov_b32 s%d, s%d" % (S_WSRD, S_WPTR))
    e("s_mov_b32 s%d, s%d" % (S_WSRD + 1, S_WPTR + 1))
    if STAMP:
        e("s_add_u32 s%d, s%d, 0x800000" % (S_SSRD, S_WPTR))
        e("s_addc_u32 s%d, s%d, 0" % (S_SSRD + 1, S_WPTR + 1))
        e("s_mov_b32 s%d, 0x10000" % (S_SSRD + 2))
        e("s_mov_b32 s%d, 0x20000" % (S_SSRD + 3))
        e("s_lshl_b32 s%d, s2, 7" % S_SOFF)
    stamp()
    e("s_mov_b32 s%d, s%d" % (S_T0, S_MT))
    for s in xsrd_tile_ins(True): e(s)
    for grp in xdma_groups():
        e(grp[0]); e("s_nop 0")
        for s in (grp[2] if isinstance(grp[2], tuple) else (grp[2],)): e(s)
    for s in XDMA_POST: e(s)
    for tap in range(5):
        for nb in range(4): e(wload(0, tap, nb))
        e(WADV)
    M = V_T + 2; KQ = V_T + 3; TMP = V_T + 4; TMP2 = V_T + 5; TMP3 = V_T + 6
    e("v_and_b32 v%d, 15, v%d" % (M, L))
    e("v_lshrrev_b32 v%d, 4, v%d" % (KQ, L))
    e("v_lshlrev_b32 v%d, 14, v%d" % (V_OOFF, M))
    e("v_lshl_add_u32 v%d, v%d, 4, v%d" % (V_OOFF, KQ, V_OOFF))
    for s in range(2):
        for ks in range(2):
            dst = V_XA + s * 2 + ks
            e("v_add_u32 v%d, %d, v%d" % (TMP, s, M))
            e("v_bfe_u32 v%d, v%d, 1, 3" % (TMP2, TMP))
            e("v_add_u32 v%d, %d, v%d" % (TMP3, 4 * ks, KQ))
            e("v_xor_b32 v%d, v%d, v%d" % (TMP2, TMP2, TMP3))
            e("v_lshlrev_b32 v%d, 4, v%d" % (TMP2, TMP2))
            e("v_lshl_add_u32 v%d, v%d, 7, v%d" % (dst, TMP, TMP2))
    e("s_mov_b32 s%d, 0x4038aa3b" % S_C1)
    e("s_mov_b32 s%d, 0xbfb8aa3b" % S_C2)
    e("s_mov_b32 s%d, 0" % S_TILE)
    e("s_mov_b32 s%d, 0x20000" % (S_OSRD + 3))
    e("s_mov_b32 s%d, %d" % (S_OSRD + 2, BATCHB))
    out_tile_ins()
    e("s_waitcnt vmcnt(20)")
    e("s_barrier")
    for q in range(PRE): e(xread(0, 0, q))
    e("s_waitcnt vmcnt(0)")
    stamp()
    P0 = [('own', 0, j) for j in range(8)]
    P1prev = [('prev', 1, j) for j in range(8)]
    cm("chunk 0 (tile 0)")
    chunk(NAT, first=True)
    lab("L_tile")
    e("s_mov_b32 s%d, 6" % S_CNT)
    out.append(".p2align 6")
    lab("L_mid")
    chunk(NAT)
    e("s_sub_u32 s%d, s%d, 1" % (S_CNT, S_CNT))
    e("s_cmp_lg_u32 s%d, 0" % S_CNT)
    e("s_cbranch_scc1 L_mid")
    stamp()
    cm("chunk 7")
    if OVERLAP:
        chunk(REO, last=True, epi=P0)
    else:
        chunk(NAT, last=True)
        epilogue_tail([(p, j) for p in range(2) for j in range(8)])
    stamp()
    e("s_cmp_lg_u32 s%d, 0" % S_TILE)
    e("s_cbranch_scc1 L_final")
    e("s_mov_b32 s%d, 1" % S_TILE)
    cm("chunk 0 (tile 1)")
    if OVERLAP:
        chunk(REO, first=True, epi=P1prev)
    else:
        chunk(NAT, first=True)
    e("s_add_u32 s%d, s%d, 1" % (S_MT, S_MT))
    out_tile_ins()
    stamp()
    e("s_branch L_tile")
    lab("L_final")
    if OVERLAP:
        epilogue_tail([(1, j) for j in range(8)])
    stamp()
    e("s_waitcnt vmcnt(0) lgkmcnt(0)")
    lab("L_done")
    e("s_endpgm")

def prep_kernel():
    K = "wprep_kernel"
    out.append(".globl " + K); out.append(".p2align 8"); out.append(".type %s,@function" % K)
    lab(K)
    e("s_cmp_ge_u32 s2, 160")
    e("s_cbranch_scc1 L_pdone")
    e("s_load_dwordx2 s[4:5], s[0:1], 8")
    e("s_load_dwordx2 s[8:9], s[0:1], 32")
    e("s_lshl_b32 s3, s2, 8")
    e("v_add_u32 v0, s3, v0")
    e("v_and_b32 v1, 127, v0")
    e("v_lshrrev_b32 v2, 7, v0")
    e("v_lshlrev_b32 v3, 14, v2")
    e("v_lshl_add_u32 v3, v1, 4, v3")
    e("v_add_u32 v4, 0x1000, v3")
    e("v_add_u32 v5, 0x2000, v3")
    e("v_add_u32 v6, 0x3000, v3")
    e("s_mov_b32 s6, %d" % WPB)
    e("s_mov_b32 s7, 0x20000")
    e("s_mov_b32 s10, %d" % WPB)
    e("s_mov_b32 s11, 0x20000")
    e("s_waitcnt lgkmcnt(0)")
    for jj in range(8):
        e("buffer_load_dwordx4 v[%d:%d], v%d, s[4:7], 0 offen offset:%d" % (16 + jj * 4, 19 + jj * 4, 3 + jj // 2, (jj & 1) * 2048))
    e("v_lshrrev_b32 v7, 6, v1")
    e("v_and_b32 v8, 63, v1")
    e("v_lshrrev_b32 v9, 2, v8")
    e("s_mov_b32 s12, 327680")
    e("v_mul_lo_u32 v9, v9, s12")
    e("v_and_b32 v8, 3, v8")
    e("v_lshl_add_u32 v9, v8, 6, v9")
    e("v_lshl_add_u32 v9, v7, 11, v9")
    e("v_lshrrev_b32 v10, 6, v2")
    e("v_lshl_add_u32 v9, v10, 12, v9")
    e("v_and_b32 v10, 63, v2")
    e("v_and_b32 v11, 3, v10")
    e("v_lshl_add_u32 v9, v11, 8, v9")
    e("v_lshrrev_b32 v10, 2, v10")
    e("v_mul_u32_u24 v10, 20480, v10")
    e("v_add_u32 v9, v9, v10")
    e("s_mov_b32 s13, 0x05040100")
    e("s_mov_b32 s14, 0x07060302")
    e("s_waitcnt vmcnt(0)")
    for ee in range(8):
        dst = 48 + ee * 4
        for kp in range(4):
            lo = 16 + (2 * kp) * 4 + (ee >> 1)
            hi = 16 + (2 * kp + 1) * 4 + (ee >> 1)
            e("v_perm_b32 v%d, v%d, v%d, s%d" % (dst + kp, hi, lo, 13 + (ee & 1)))
        e("buffer_store_dwordx4 v[%d:%d], v9, s[8:11], 0 offen offset:%d" % (dst, dst + 3, (ee >> 2) * 1024 + (ee & 3) * 16))
    e("s_waitcnt vmcnt(0)")
    lab("L_pdone")
    e("s_endpgm")

def kd(name, vgpr, sgpr, acc):
    out.append(".p2align 6")
    out.append(".amdhsa_kernel " + name)
    out.append("  .amdhsa_next_free_vgpr %d" % vgpr)
    out.append("  .amdhsa_next_free_sgpr %d" % sgpr)
    out.append("  .amdhsa_accum_offset %d" % acc)
    out.append("  .amdhsa_group_segment_fixed_size 0")
    out.append("  .amdhsa_kernarg_size 40")
    out.append("  .amdhsa_user_sgpr_count 2")
    out.append("  .amdhsa_user_sgpr_kernarg_segment_ptr 1")
    out.append("  .amdhsa_system_sgpr_workgroup_id_x 1")
    out.append(".end_amdhsa_kernel")

hdr = open("cdna_kernels/%s.s.ref" % NAME).read().split("\n")
for l in hdr:
    if l.startswith(";") and "@launch" not in l and "Override" not in l and "grid=ceil" not in l:
        out.append(l)
out.append("; @launch kernel=wprep_kernel grid=(160,1,1) block=(256,1,1) lds=0")
out.append("; @launch kernel=%s_kernel grid=(256,1,1) block=(256,1,1) lds=%d" % (NAME, LDS_BYTES))
out.append('.amdgcn_target "amdgcn-amd-amdhsa--gfx950"')
out.append(".text")
main_kernel()
prep_kernel()
out.append('.section .rodata,"a"')
kd(NAME + "_kernel", 512, 96, 256)
kd("wprep_kernel", 80, 24, 80)
dst = sys.argv[1] if len(sys.argv) > 1 else "cdna_kernels/%s.s" % NAME
open(dst, "w").write("\n".join(out) + "\n")
print("wrote", dst, len(out), "lines")
```

```python
import sys, os, re, copy

NAME = "standalone__autoregressive_conv_wavernn__speech"
T = 16000
BATCHB = T * 1024
WPB = 5 * 512 * 1024 * 2
SLOT_XOR = 0x10000
CLS = 17 * 128
WL0 = 34816
WL1 = 0x10000 + 34816
LDS_BYTES = WL1 + 3 * 20480
STAMP = os.environ.get("STAMP") is not None
MAPPING = int(os.environ.get("MAPPING", "0"))
CAP = int(os.environ.get("CAP", "8"))
WSPACE = int(os.environ.get("WSPACE", "13"))
XSPACE = int(os.environ.get("XSPACE", "36"))
XLAT = int(os.environ.get("XLAT", "150"))
TRSP = int(os.environ.get("TRSP", "3"))
XNT = "" if os.environ.get("NOXNT") else " nt"

out = []
def e(s): out.append("    " + s)
def lab(s): out.append(s + ":")
def cm(s): out.append("    ; " + s)

def WREGN(st, tap, nb): return st * 80 + (tap * 4 + nb) * 4
def WREG(st, tap, nb):
    b = WREGN(st, tap, nb); return "a[%d:%d]" % (b, b + 3)
def XREG(q):
    b = 160 + q * 4; return "a[%d:%d]" % (b, b + 3)
NVACC = 52
def ACC(p, j, nb):
    idx = (p * 8 + j) * 4 + nb
    if idx < NVACC: return ('v', 48 + idx * 4)
    return ('a', 208 + (idx - NVACC) * 4)
def ACCS(p, j, nb):
    k, b = ACC(p, j, nb); return "%s[%d:%d]" % (k, b, b + 3)

V_XA = 1; V_WOFF = 5; V_OOFF = 6; V_DCUR = 7
V_T = 16
V_WTR = 46
S_XSRD = 4; S_WSRD = 8; S_OSRD = 12
S_XPTR = 16; S_OPTR = 18; S_WPTR = 20
S_WAVE = 22; S_MT = 23; S_NT = 24; S_WTMP = 25
S_M0 = 26; S_M0H = 27; S_WS = 28; S_WL = 29; S_CNT = 30
S_HEXEC = 32
S_T0 = 34
S_OBASE = 40; S_TILE = 41; S_C1 = 42; S_C2 = 43; S_TB = 44; S_OCOL = 45; S_ST = 46
S_SSRD = 48; S_SOFF = 52; S_WSP = 60

_stn = [0]
def stamp():
    if not STAMP: return
    _stn[0] += 1
    e("s_memtime s[56:57]"); e("s_memrealtime s[58:59]"); e("s_waitcnt lgkmcnt(0)")
    e("s_cmp_lg_u32 s%d, 0" % S_WAVE)
    e("s_cbranch_scc1 L_st%d" % _stn[0])
    for k in range(4): e("v_mov_b32 v%d, s%d" % (40 + k, 56 + k))
    e("s_mov_b64 exec, 1")
    e("buffer_store_dwordx4 v[40:43], off, s[%d:%d], s%d" % (S_SSRD, S_SSRD + 3, S_SOFF))
    e("s_mov_b64 exec, -1"); e("s_nop 1")
    lab("L_st%d" % _stn[0])
    e("s_add_u32 s%d, s%d, 16" % (S_SOFF, S_SOFF))

NAT = [(0, 0), (0, 1), (1, 0), (1, 1)]
REO = [(0, 0), (1, 0), (0, 1), (1, 1)]
PRE = 6

class I:
    def __init__(self, t, tag=None, cls=None, needs=()):
        self.t = t; self.tag = tag; self.cls = cls; self.needs = list(needs)

def cost(ins):
    op = ins.t.split()[0]
    if op in ("v_exp_f32", "v_rcp_f32"): return 8
    if op.startswith("s_"): return 2
    return 4

def xread(ks, p, q, tag):
    s = 1 if q >= 8 else 0
    c = (p + 2 * q) % 16
    return I("ds_read_b128 %s, v%d offset:%d" % (XREG(q), V_XA + s * 2 + ks, c * CLS), tag, 'l')

def xsrd_tile_ins():
    ins = []
    ins.append(("s_cmp_ge_u32 s%d, 63" % S_T0, "s_cselect_b32 s%d, 63, 0" % (S_T0 + 1), "s_cselect_b32 s%d, %d, 0" % (S_T0 + 2, BATCHB)))
    ins.append(("s_sub_u32 s%d, s%d, s%d" % (S_T0 + 1, S_T0, S_T0 + 1),))
    ins.append(("s_add_u32 s%d, s%d, s%d" % (S_XSRD, S_XPTR, S_T0 + 2), "s_addc_u32 s%d, s%d, 0" % (S_XSRD + 1, S_XPTR + 1)))
    ins.append(("s_cmp_lt_u32 s%d, 126" % S_T0, "s_cselect_b32 s%d, %d, 0" % (S_XSRD + 2, BATCHB)))
    ins.append(("s_lshl_b32 s%d, s%d, 18" % (S_T0 + 1, S_T0 + 1),))
    ins.append(("s_sub_u32 s%d, s%d, s%d" % (S_T0 + 2, S_T0 + 1, S_TB),))
    ins.append(("s_mov_b32 s%d, s%d" % (S_TB, S_T0 + 1),))
    for k in range(9):
        ins.append(("v_add_u32 v%d, s%d, v%d" % (V_DCUR + k, S_T0 + 2, V_DCUR + k),))
    return ins

def xdma(k):
    ld = "buffer_load_dwordx4 v%d, s[%d:%d], 0 offen%s lds" % (V_DCUR + k, S_XSRD, S_XSRD + 3, XNT)
    if k < 8:
        return (I("s_add_u32 m0, s%d, %d" % (S_M0, k * 1024)), I("s_nop 0"), I(ld, ('xd', k), 'v'))
    return (I("s_mov_b32 m0, s%d" % S_M0H), I("s_mov_b64 exec, s[%d:%d]" % (S_HEXEC, S_HEXEC + 1)),
            I(ld, ('xd', k), 'v'), I("s_mov_b64 exec, -1"))
XDMA_POST = [("s_add_u32 s%d, s%d, 128" % (S_XSRD, S_XSRD), "s_addc_u32 s%d, s%d, 0" % (S_XSRD + 1, S_XSRD + 1)),
             ("s_xor_b32 s%d, s%d, 0x%x" % (S_M0, S_M0, SLOT_XOR),),
             ("s_xor_b32 s%d, s%d, 0x%x" % (S_M0H, S_M0H, SLOT_XOR),)]

def wdma(sub, prev, tap, dh, hf):
    needs = [('wt', prev, tap, 2 * hf + b, t) for b in range(2) for t in range(2)] if prev else []
    return (I("s_add_u32 m0, s%d, %d" % (S_WL, tap * 4096 + dh * 2048)),
            I("s_add_u32 s%d, s%d, %d" % (S_WTMP, S_WS, tap * 1048576 + dh * 32768)),
            I("buffer_load_dwordx4 v%d, s[%d:%d], s%d offen offset:%d lds" % (V_WOFF, S_WSRD, S_WSRD + 3, S_WTMP, hf * 1024),
              ('wd', sub, tap, dh, hf), 'v', needs))
def wtr(sub, st, tap, nb, t):
    b = WREGN(st, tap, nb) + 2 * t
    hf = nb >> 1
    return I("ds_read_b64_tr_b16 a[%d:%d], v%d offset:%d" % (b, b + 1, V_WTR, tap * 4096 + hf * 1024 + t * 256 + (nb & 1) * 8),
             ('wt', sub, tap, nb, t), 'l', [('wd', sub, tap, dh, hf) for dh in range(2)])
WADV = "s_add_u32 s%d, s%d, 0x10000" % (S_WS, S_WS)

def epi_block(p, j, tb):
    sl = []
    regs = {}
    for nb in range(4):
        k, b = ACC(p, j, nb)
        for r in range(4): regs[(nb, r)] = (k, b + r)
    PK = tb
    for h in range(2):
        E = [tb + 4 + h * 8 + k for k in range(4)]
        G = [tb + 8 + h * 8 + k for k in range(4)]
        src = {}; rd = []
        for k in range(4):
            kind, r = regs[(h, k)]
            if kind == 'a':
                rd.append("v_accvgpr_read_b32 v%d, a%d" % (E[k], r)); r = E[k]
            src[('e', k)] = r
            kind, r = regs[(2 + h, k)]
            if kind == 'a':
                rd.append("v_accvgpr_read_b32 v%d, a%d" % (G[k], r)); r = G[k]
            src[('g', k)] = r
        for i in range(0, len(rd), 2): sl.append(tuple(rd[i:i + 2]))
        mulE = ["v_mul_f32 v%d, s%d, v%d" % (E[k], S_C1, src[('e', k)]) for k in range(4)]
        mulG = ["v_mul_f32 v%d, s%d, v%d" % (G[k], S_C2, src[('g', k)]) for k in range(4)]
        mn = ["v_min_f32 v%d, 0x41f00000, v%d" % (E[k], E[k]) for k in range(4)]
        eG = ["v_exp_f32 v%d, v%d" % (G[k], G[k]) for k in range(4)]
        eE = ["v_exp_f32 v%d, v%d" % (E[k], E[k]) for k in range(4)]
        aG = ["v_add_f32 v%d, 1.0, v%d" % (G[k], G[k]) for k in range(4)]
        den = ["v_fma_f32 v%d, v%d, v%d, v%d" % (G[k], E[k], G[k], G[k]) for k in range(4)]
        rc = ["v_rcp_f32 v%d, v%d" % (G[k], G[k]) for k in range(4)]
        fin = ["v_fma_f32 v%d, v%d, v%d, -v%d" % (E[k], E[k], G[k], G[k]) for k in range(4)]
        cv = ["v_cvt_pk_bf16_f32 v%d, v%d, v%d" % (PK + 2 * h + k, E[2 * k], E[2 * k + 1]) for k in range(2)]
        sl += [(mulG[0], mulG[1]), (mulG[2], mulG[3]), (mulE[0], mulE[1]), (eG[0],), (mulE[2], mulE[3]), (eG[1],),
               (mn[0], mn[1]), (eG[2],), (mn[2], mn[3]), (eG[3],), (eE[0],), (aG[0], aG[1]), (eE[1],), (aG[2], aG[3]),
               (eE[2],), (eE[3],), (den[0], den[1]), (den[2], den[3]), (rc[0],), (rc[1],), (rc[2],), (rc[3],),
               (fin[0], fin[1]), (fin[2], fin[3]), (cv[0], cv[1])]
    res = [[I(x) for x in s] for s in sl]
    res.append([I("s_add_u32 s%d, s%d, %d" % (S_ST, S_OBASE, (p + 2 * j) * 1024)),
                I("buffer_store_dwordx4 v[%d:%d], v%d, s[%d:%d], s%d offen" % (PK, PK + 3, V_OOFF, S_OSRD, S_OSRD + 3, S_ST), ('st', p, j), 'v')])
    return res
EPI_TB = V_T

def acc_reads(t):
    m = re.match(r"v_accvgpr_read_b32 v\d+, a(\d+)", t)
    if m: return ('a', int(m.group(1)))
    m = re.match(r"v_mul_f32 v\d+, s\d+, v(\d+)", t)
    if m and int(m.group(1)) >= 48: return ('v', int(m.group(1)))
    return None

WORDER = [(hf, tap) for hf in range(2) for tap in range(5)]

def plan(order, first=False, last=False, epi=None, b_start=2):
    mf = []; xuse = {}; wuse = {}; accw = {}
    seen = set()
    for g, (ks, p) in enumerate(order):
        for j in range(8):
            nbs = [0, 1, 2, 3] if j % 2 == 0 else [3, 2, 1, 0]
            for ci, nb in enumerate(nbs):
                taps = list(range(5)) if ci % 2 == 0 else list(range(4, -1, -1))
                for i in taps:
                    acc = ACCS(p, j, nb)
                    csrc = acc
                    if first and (p, j, nb) not in seen: csrc = "0"
                    seen.add((p, j, nb))
                    idx = len(mf)
                    sub = 'A' if ks == 0 else 'B'
                    mf.append(I("v_mfma_f32_16x16x32_bf16 %s, %s, %s, %s" % (acc, WREG(ks, i, nb), XREG(j + i), csrc),
                                needs=[('xr', g, j + i), ('wt', sub, i, nb, 0), ('wt', sub, i, nb, 1)]))
                    xuse.setdefault((g, j + i), []).append(idx)
                    wuse.setdefault((ks, i, nb), []).append(idx)
                    accw.setdefault((p, j, nb), []).append(idx)
    NM = len(mf)
    gaps = [[] for _ in range(NM + 1)]
    used = [0] * (NM + 1)
    def put(k, ins):
        gaps[k].append(ins); used[k] += cost(ins)
    def place(k, ins, cap=8):
        tup = ins if isinstance(ins, tuple) else (ins,)
        tup = tuple(x if isinstance(x, I) else I(x) for x in tup)
        c = sum(cost(x) for x in tup)
        while used[k] + c > max(cap, c): k += 1
        for x in tup: put(k, x)
        return k
    prev_k = 0
    for g in range(4):
        for q in range(12):
            if g == 0 and q < PRE: continue
            earliest = (max(xuse[(g - 1, q)]) + 1) if g > 0 else 0
            fu = min(xuse[(g, q)])
            k = place(max(earliest, prev_k, fu - 60), xread(order[g][0], order[g][1], q, ('xr', g, q)))
            assert k < fu - 5, (g, q, k, fu)
            prev_k = k
    bar_gap = max(prev_k + 8, max(xuse[(3, 0)]) + 1)
    put(bar_gap, I("s_barrier", needs=[('xd', k) for k in range(9)] + [('xr', g, q) for g in range(4) for q in range(12)]))
    kk = bar_gap + 1
    for a in range(4):
        kk = place(kk, "v_xor_b32 v%d, 0x%x, v%d" % (V_XA + a, SLOT_XOR, V_XA + a))
    for q in range(PRE):
        kk = place(max(kk, max(xuse[(3, q)]) + 1), xread(0, 0, q, ('xr', 'n', q)))
    assert kk <= NM - 8, kk
    def phase(sub, st, nsub, start, tr_end, dma_end, adv):
        n = 40
        sp = max(1, min(TRSP, (tr_end - start) // n))
        k = start
        done = {}
        for (hf, tap) in WORDER:
            for b in range(2):
                nb = 2 * hf + b
                for t in range(2):
                    lastuse = max(wuse[(st, tap, nb)])
                    e0 = lastuse + 1 if lastuse < tr_end and st == 0 else 0
                    k = place(max(k, e0), wtr(sub, st, tap, nb, t))
                    done[(hf, tap)] = k
                    k += sp
        assert k - sp < tr_end, (sub, k, tr_end)
        k = done[WORDER[0]] + 6
        if adv: place(k - 2, adv)
        dsp = max(1, min(WSPACE, (dma_end - k) // 20))
        for (hf, tap) in WORDER:
            for dh in range(2):
                k = place(max(k, done[(hf, tap)] + 6), wdma(nsub, sub, tap, dh, hf))
                k += dsp
        return k - dsp
    st1_first = min(min(v) for (ks, i, nb), v in wuse.items() if ks == 1)
    st0_end = max(max(v) for (ks, i, nb), v in wuse.items() if ks == 0) + 1
    adv1 = ("s_mov_b32 s%d, s%d" % (S_WS, S_OCOL)) if last else None
    k1 = phase('B', 1, 'A2', b_start, st1_first - 12, st0_end - 60, adv1)
    assert k1 < st0_end - 40, (k1, st0_end)
    k2 = phase('A2', 0, 'B2', st0_end, NM - 20, NM - 2, WADV)
    place(k2 + 1, WADV)
    k = 7
    if last:
        k = place(k, "s_add_u32 s%d, s%d, 1" % (S_T0, S_MT))
        k = place(k, ("s_cmp_eq_u32 s%d, 0" % S_TILE, "s_cselect_b32 s%d, s%d, 126" % (S_T0, S_T0)))
        for s_ in xsrd_tile_ins(): k = place(k, s_)
        k += 2
    xsp = min(XSPACE, (bar_gap - XLAT - k) // 9)
    for kx in range(9):
        k = place(k, xdma(kx)); kl = k
        k += xsp
    k = kl + 1
    for s_ in XDMA_POST: k = place(k, s_)
    if epi:
        base_gaps = [list(g) for g in gaps]; base_used = list(used)
        done = False
        for num in range(0, 33):
            gaps[:] = [list(g) for g in base_gaps]; used[:] = base_used
            def capf(k):
                if num <= 16: return CAP + 4 if (k * num) % 16 < num else CAP
                return CAP + 8 if (k * (num - 16)) % 16 < (num - 16) else CAP + 4
            k = 0; ok = True
            for (which, p, j) in epi:
                if which == 'own':
                    k = max(k, max(max(accw[(p, j, nb)]) for nb in range(4)) + 9)
                for slot in epi_block(p, j, EPI_TB):
                    for ins in slot:
                        c = cost(ins)
                        while k < NM and used[k] + c > capf(k): k += 1
                        if k >= NM - 3: ok = False; break
                        put(k, ins)
                        ar = acc_reads(ins.t)
                        if which == 'prev' and ar is not None:
                            for nb in range(4):
                                kind, b = ACC(p, j, nb)
                                if kind == ar[0] and b <= ar[1] < b + 4 and k > min(accw[(p, j, nb)]): ok = False
                    if not ok: break
                if not ok: break
            if ok:
                sys.stderr.write("epilogue fill: num=%d ends at gap %d\n" % (num, k)); done = True; break
        assert done
    seq = []
    for k in range(NM + 1):
        seq += gaps[k]
        if k < NM: seq.append(mf[k])
    return seq

def rename_exit(q):
    r = []
    for t in q:
        if t[0] == 'xr': r.append(('xr', 0, t[2]) if t[1] == 'n' else ('old',))
        elif t[0] in ('wt', 'wd') and t[1] in ('A2', 'B2'): r.append((t[0], t[1][0]) + t[2:])
        else: r.append(('old',))
    return r

def simulate(seq, entry, forced=None):
    vq, lq = list(entry[0]), list(entry[1])
    waits = {}
    for i, ins in enumerate(seq):
        vm = lg = None
        for n in ins.needs:
            if n in vq:
                c = len(vq) - 1 - vq.index(n); vm = c if vm is None else min(vm, c)
            if n in lq:
                c = len(lq) - 1 - lq.index(n); lg = c if lg is None else min(lg, c)
        if forced and i in forced:
            fv, fl = forced[i]
            if fv is not None: vm = fv if vm is None else min(vm, fv)
            if fl is not None: lg = fl if lg is None else min(lg, fl)
        if vm is not None:
            assert vm <= 63
            if vm < len(vq): vq = vq[len(vq) - vm:] if vm else []
        if lg is not None:
            lg = min(lg, 15)
            if lg < len(lq): lq = lq[len(lq) - lg:] if lg else []
        if vm is not None or lg is not None: waits[i] = (vm, lg)
        if ins.cls == 'v': vq.append(ins.tag)
        if ins.cls == 'l': lq.append(ins.tag)
    return waits, (rename_exit(vq), rename_exit(lq))

def merge(w1, w2):
    r = dict(w1)
    for i, (v, l) in w2.items():
        if i in r:
            a, b = r[i]
            v2 = a if v is None else (v if a is None else min(a, v))
            l2 = b if l is None else (l if b is None else min(b, l))
            r[i] = (v2, l2)
        else: r[i] = (v, l)
    return r

def emit(seq, waits):
    for i, ins in enumerate(seq):
        if i in waits:
            v, l = waits[i]
            w = []
            if v is not None: w.append("vmcnt(%d)" % v)
            if l is not None: w.append("lgkmcnt(%d)" % l)
            e("s_waitcnt " + " ".join(w))
        e(ins.t)

def out_tile_ins():
    e("s_cmp_ge_u32 s%d, 63" % S_MT)
    e("s_cselect_b32 s%d, 63, 0" % (S_T0 + 1))
    e("s_cselect_b32 s%d, %d, 0" % (S_T0 + 2, BATCHB))
    e("s_sub_u32 s%d, s%d, s%d" % (S_T0 + 1, S_MT, S_T0 + 1))
    e("s_add_u32 s%d, s%d, s%d" % (S_OSRD, S_OPTR, S_T0 + 2))
    e("s_addc_u32 s%d, s%d, 0" % (S_OSRD + 1, S_OPTR + 1))
    e("s_lshl_b32 s%d, s%d, 18" % (S_OBASE, S_T0 + 1))
    e("s_add_u32 s%d, s%d, s%d" % (S_OBASE, S_OBASE, S_OCOL))

def main_kernel():
    K = NAME + "_kernel"
    out.append(".globl " + K); out.append(".p2align 8"); out.append(".type %s,@function" % K)
    lab(K)
    e("s_load_dwordx4 s[%d:%d], s[0:1], 0" % (S_XPTR, S_XPTR + 3))
    e("s_load_dwordx2 s[%d:%d], s[0:1], 16" % (S_WPTR, S_WPTR + 1))
    if STAMP: e("s_load_dwordx2 s[%d:%d], s[0:1], 32" % (S_WSP, S_WSP + 1))
    e("s_cmp_ge_u32 s2, 256")
    e("s_cbranch_scc1 L_done")
    e("s_and_b32 s%d, s2, 7" % S_T0)
    e("s_lshr_b32 s%d, s2, 3" % (S_T0 + 1))
    if MAPPING == 0:
        e("s_and_b32 s%d, s%d, 3" % (S_NT, S_T0 + 1))
        e("s_lshr_b32 s%d, s%d, 2" % (S_T0 + 1, S_T0 + 1))
        e("s_lshl_b32 s%d, s%d, 3" % (S_T0 + 1, S_T0 + 1))
        e("s_add_u32 s%d, s%d, s%d" % (S_T0, S_T0, S_T0 + 1))
    elif MAPPING == 2:
        e("s_and_b32 s%d, s%d, 1" % (S_NT, S_T0))
        e("s_lshl_b32 s%d, s%d, 1" % (S_NT, S_NT))
        e("s_and_b32 s%d, s%d, 1" % (S_T0 + 2, S_T0 + 1))
        e("s_add_u32 s%d, s%d, s%d" % (S_NT, S_NT, S_T0 + 2))
        e("s_lshr_b32 s%d, s%d, 1" % (S_T0, S_T0))
        e("s_lshr_b32 s%d, s%d, 1" % (S_T0 + 1, S_T0 + 1))
        e("s_lshl_b32 s%d, s%d, 2" % (S_T0 + 1, S_T0 + 1))
        e("s_add_u32 s%d, s%d, s%d" % (S_T0, S_T0, S_T0 + 1))
    e("s_cmp_ge_u32 s%d, 63" % S_T0)
    e("s_cbranch_scc1 L_done")
    e("s_lshl_b32 s%d, s%d, 1" % (S_MT, S_T0))
    e("v_lshrrev_b32 v%d, 6, v0" % V_T)
    e("v_and_b32 v%d, 63, v0" % (V_T + 1))
    L = V_T + 1
    e("v_lshrrev_b32 v%d, 2, v%d" % (V_WOFF, L))
    e("v_readfirstlane_b32 s%d, v%d" % (S_WAVE, V_T))
    e("v_lshlrev_b32 v%d, 11, v%d" % (V_WOFF, V_WOFF))
    e("v_and_b32 v%d, 3, v%d" % (V_T + 2, L))
    e("v_lshl_add_u32 v%d, v%d, 4, v%d" % (V_WOFF, V_T + 2, V_WOFF))
    e("s_lshl_b32 s%d, s%d, 2" % (S_T0, S_NT))
    e("s_add_u32 s%d, s%d, s%d" % (S_T0, S_T0, S_WAVE))
    e("s_lshl_b32 s%d, s%d, 6" % (S_OCOL, S_T0))
    e("s_mov_b32 s%d, s%d" % (S_WS, S_OCOL))
    e("s_mul_i32 s%d, s%d, 20480" % (S_WL, S_WAVE))
    e("s_add_u32 s%d, s%d, %d" % (S_WL, S_WL, WL1 - 20480))
    e("s_cmp_eq_u32 s%d, 0" % S_WAVE)
    e("s_cselect_b32 s%d, %d, s%d" % (S_WL, WL0, S_WL))
    e("s_mov_b32 s%d, %d" % (S_WSRD + 2, WPB))
    e("s_mov_b32 s%d, 0x20000" % (S_WSRD + 3))
    e("s_mov_b32 s%d, 0x20000" % (S_XSRD + 3))
    e("s_waitcnt lgkmcnt(0)")
    e("s_mov_b32 s%d, s%d" % (S_WSRD, S_XPTR + 2))
    e("s_mov_b32 s%d, s%d" % (S_WSRD + 1, S_XPTR + 3))
    e("s_mov_b32 s%d, s%d" % (S_OPTR, S_WPTR))
    e("s_mov_b32 s%d, s%d" % (S_OPTR + 1, S_WPTR + 1))
    if STAMP:
        e("s_add_u32 s%d, s%d, 0x800000" % (S_SSRD, S_WSP))
        e("s_addc_u32 s%d, s%d, 0" % (S_SSRD + 1, S_WSP + 1))
        e("s_mov_b32 s%d, 0x10000" % (S_SSRD + 2))
        e("s_mov_b32 s%d, 0x20000" % (S_SSRD + 3))
        e("s_lshl_b32 s%d, s2, 7" % S_SOFF)
    stamp()
    pro = []
    def P(x):
        for y in (x if isinstance(x, tuple) else (x,)): pro.append(y if isinstance(y, I) else I(y))
    for (hf, tap) in WORDER:
        for dh in range(2): P(wdma('A2', None, tap, dh, hf))
    P(WADV)
    SG = V_T + 2; PI = V_T + 3; C = V_T + 4; MP = V_T + 5; F = V_T + 6; SG0 = V_T + 7
    P("v_lshrrev_b32 v%d, 3, v%d" % (SG0, L))
    P("v_and_b32 v%d, 7, v%d" % (PI, L))
    P("s_lshl_b32 s%d, s%d, 6" % (S_T0 + 3, S_WAVE))
    P("s_lshr_b32 s%d, s%d, 1" % (S_T0 + 4, S_WAVE))
    P("s_lshl_b32 s%d, s%d, 3" % (S_T0 + 4, S_T0 + 4))
    P("s_add_u32 s%d, s%d, 256" % (S_T0 + 4, S_T0 + 4))
    P("s_lshl_b32 s%d, s%d, 13" % (S_M0, S_WAVE))
    P("s_lshr_b32 s%d, s%d, 1" % (S_M0H, S_WAVE))
    P("s_lshl_b32 s%d, s%d, 10" % (S_M0H, S_M0H))
    P("s_add_u32 s%d, s%d, 0x8000" % (S_M0H, S_M0H))
    P("s_and_b32 s%d, s%d, 1" % (S_T0, S_WAVE))
    P("s_cmp_eq_u32 s%d, 0" % S_T0)
    P("s_cselect_b32 s%d, -1, 0" % S_HEXEC)
    P("s_cselect_b32 s%d, 0, -1" % (S_HEXEC + 1))
    P("s_mov_b32 s%d, 0" % S_TB)
    P("s_mov_b32 s%d, s%d" % (S_T0, S_MT))
    xi = xsrd_tile_ins()
    for s_ in xi[:7]: P(s_)
    P("s_sub_u32 s%d, s%d, 0x2000" % (S_T0 + 2, S_T0 + 2))
    for k in range(9):
        if k < 8:
            P("v_add_u32 v%d, s%d, v%d" % (SG, S_T0 + 3, SG0))
            P("s_add_u32 s%d, s%d, 8" % (S_T0 + 3, S_T0 + 3))
        else:
            P("v_add_u32 v%d, s%d, v%d" % (SG, S_T0 + 4, SG0))
        P("v_mul_u32_u24 v%d, 241, v%d" % (C, SG))
        P("v_lshrrev_b32 v%d, 12, v%d" % (C, C))
        P("v_mul_u32_u24 v%d, 17, v%d" % (MP, C))
        P("v_sub_u32 v%d, v%d, v%d" % (MP, SG, MP))
        P("v_bfe_u32 v%d, v%d, 1, 3" % (F, MP))
        P("v_xor_b32 v%d, v%d, v%d" % (F, F, PI))
        P("v_lshl_add_u32 v%d, v%d, 4, v%d" % (C, MP, C))
        P("v_lshlrev_b32 v%d, 4, v%d" % (F, F))
        P("v_lshl_add_u32 v%d, v%d, 10, v%d" % (V_DCUR + k, C, F))
        P("v_add_u32 v%d, s%d, v%d" % (V_DCUR + k, S_T0 + 2, V_DCUR + k))
        P(xdma(k))
    for s_ in XDMA_POST: P(s_)
    M = V_T + 2; KQ = V_T + 3; TMP = V_T + 4; TMP2 = V_T + 5; TMP3 = V_T + 6
    P("v_and_b32 v%d, 15, v%d" % (M, L))
    P("v_lshrrev_b32 v%d, 4, v%d" % (KQ, L))
    P("v_lshrrev_b32 v%d, 1, v%d" % (TMP, KQ))
    P("v_lshlrev_b32 v%d, 11, v%d" % (TMP, TMP))
    P("v_and_b32 v%d, 1, v%d" % (TMP2, KQ))
    P("v_lshl_add_u32 v%d, v%d, 9, v%d" % (TMP, TMP2, TMP))
    P("v_lshl_add_u32 v%d, v%d, 4, v%d" % (TMP, M, TMP))
    P("v_add_u32 v%d, s%d, v%d" % (V_WTR, S_WL, TMP))
    P("v_lshlrev_b32 v%d, 14, v%d" % (V_OOFF, M))
    P("v_lshl_add_u32 v%d, v%d, 4, v%d" % (V_OOFF, KQ, V_OOFF))
    for s in range(2):
        for ks in range(2):
            dst = V_XA + s * 2 + ks
            P("v_add_u32 v%d, %d, v%d" % (TMP, s, M))
            P("v_bfe_u32 v%d, v%d, 1, 3" % (TMP2, TMP))
            P("v_add_u32 v%d, %d, v%d" % (TMP3, 4 * ks, KQ))
            P("v_xor_b32 v%d, v%d, v%d" % (TMP2, TMP2, TMP3))
            P("v_lshlrev_b32 v%d, 4, v%d" % (TMP2, TMP2))
            P("v_lshl_add_u32 v%d, v%d, 7, v%d" % (dst, TMP, TMP2))
    P("s_mov_b32 s%d, 0x4038aa3b" % S_C1)
    P("s_mov_b32 s%d, 0xbfb8aa3b" % S_C2)
    P("s_mov_b32 s%d, 0" % S_TILE)
    P("s_mov_b32 s%d, 0x20000" % (S_OSRD + 3))
    P("s_mov_b32 s%d, %d" % (S_OSRD + 2, BATCHB))
    for (hf, tap) in WORDER:
        for b in range(2):
            for t in range(2): P(wtr('A2', 0, tap, 2 * hf + b, t))
    for (hf, tap) in WORDER:
        for dh in range(2): P(wdma('B2', 'A2', tap, dh, hf))
    P(WADV)
    P(I("s_barrier", needs=[('xd', k) for k in range(9)]))
    for q in range(PRE): P(xread(0, 0, q, ('xr', 'n', q)))
    w, st_pro = simulate(pro, ([], []))
    emit(pro, w)
    out_tile_ins()
    stamp()
    P0 = [('own', 0, j) for j in range(8)]
    P1prev = [('prev', 1, j) for j in range(8)]
    c0 = plan(NAT, first=True, b_start=int(os.environ.get("BSTART", "100")))
    mid = plan(NAT)
    c7 = plan(REO, last=True, epi=P0)
    c0p = plan(REO, first=True, epi=P1prev)
    w0, x0 = simulate(c0, st_pro)
    wm = {}; w7 = {}; w0p = {}
    entries_mid = [x0]
    for it in range(6):
        wm_new = {}
        for en in entries_mid:
            w_, _ = simulate(mid, en, wm); wm_new = merge(wm_new, w_)
        exits = [simulate(mid, en, wm_new)[1] for en in entries_mid]
        w7n = {}
        for en in exits: w7n = merge(w7n, simulate(c7, en, w7)[0])
        x7 = [simulate(c7, en, w7n)[1] for en in exits]
        w0n = {}
        for en in x7: w0n = merge(w0n, simulate(c0p, en, w0p)[0])
        x0p = [simulate(c0p, en, w0n)[1] for en in x7]
        new_entries = []
        for en in [x0] + exits + x0p:
            if en not in new_entries: new_entries.append(en)
        stable = (wm_new == wm and w7n == w7 and w0n == w0p and len(new_entries) == len(entries_mid))
        wm, w7, w0p, entries_mid = wm_new, w7n, w0n, new_entries
        if stable: break
    assert stable
    cm("chunk 0 (tile 0)")
    emit(c0, w0)
    lab("L_tile")
    e("s_mov_b32 s%d, 6" % S_CNT)
    out.append(".p2align 6")
    lab("L_mid")
    emit(mid, wm)
    e("s_sub_u32 s%d, s%d, 1" % (S_CNT, S_CNT))
    e("s_cmp_lg_u32 s%d, 0" % S_CNT)
    e("s_cbranch_scc1 L_mid")
    stamp()
    cm("chunk 7")
    emit(c7, w7)
    stamp()
    e("s_cmp_lg_u32 s%d, 0" % S_TILE)
    e("s_cbranch_scc1 L_final")
    e("s_mov_b32 s%d, 1" % S_TILE)
    cm("chunk 0 (tile 1)")
    emit(c0p, w0p)
    e("s_add_u32 s%d, s%d, 1" % (S_MT, S_MT))
    out_tile_ins()
    stamp()
    e("s_branch L_tile")
    lab("L_final")
    cm("exposed epilogue")
    e("s_nop 7")
    for j in range(8):
        for slot in epi_block(1, j, EPI_TB):
            for ins in slot: e(ins.t)
        e("s_nop 1")
    stamp()
    e("s_waitcnt vmcnt(0) lgkmcnt(0)")
    lab("L_done")
    e("s_endpgm")

hdr = open("cdna_kernels/%s.s.ref" % NAME).read().split("\n")
for l in hdr:
    if l.startswith(";") and "@launch" not in l and "Override" not in l and "grid=ceil" not in l:
        out.append(l)
out.append("; @launch grid=(256,1,1) block=(256,1,1) lds=%d" % LDS_BYTES)
out.append('.amdgcn_target "amdgcn-amd-amdhsa--gfx950"')
out.append(".text")
main_kernel()
out.append('.section .rodata,"a"')
out.append(".p2align 6")
out.append(".amdhsa_kernel %s_kernel" % NAME)
out += ["  .amdhsa_next_free_vgpr 512", "  .amdhsa_next_free_sgpr 96", "  .amdhsa_accum_offset 256",
        "  .amdhsa_group_segment_fixed_size 0", "  .amdhsa_kernarg_size 40", "  .amdhsa_user_sgpr_count 2",
        "  .amdhsa_user_sgpr_kernarg_segment_ptr 1", "  .amdhsa_system_sgpr_workgroup_id_x 1", ".end_amdhsa_kernel"]
dst = sys.argv[1] if len(sys.argv) > 1 else "cdna_kernels/%s.s" % NAME
open(dst, "w").write("\n".join(out) + "\n")
print("wrote", dst, len(out), "lines")
```

```python
import sys, os, re, copy

NAME = "standalone__autoregressive_conv_wavernn__speech"
T = 16000
BATCHB = T * 1024
WPB = 5 * 512 * 1024 * 2
SLOT_XOR = 0x10000
CLS = 17 * 128
WL0 = 34816
WL1 = 0x10000 + 34816
LDS_BYTES = WL1 + 3 * 20480
STAMP = os.environ.get("STAMP") is not None
MAPPING = int(os.environ.get("MAPPING", "0"))
CAP = int(os.environ.get("CAP", "8"))
WSPACE = int(os.environ.get("WSPACE", "13"))
XSPACE = int(os.environ.get("XSPACE", "36"))
XLAT = int(os.environ.get("XLAT", "150"))
TRSP = int(os.environ.get("TRSP", "3"))
VOLD = int(os.environ.get("VOLD", "120"))
LOLD = int(os.environ.get("LOLD", "12"))
PF = os.environ.get("NOPF") is None
XNT = "" if os.environ.get("NOXNT") else " nt"

out = []
def e(s): out.append("    " + s)
def lab(s): out.append(s + ":")
def cm(s): out.append("    ; " + s)

def WREGN(st, tap, nb): return st * 80 + (tap * 4 + nb) * 4
def WREG(st, tap, nb):
    b = WREGN(st, tap, nb); return "a[%d:%d]" % (b, b + 3)
def XREG(q):
    b = 160 + q * 4; return "a[%d:%d]" % (b, b + 3)
NVACC = 52
def ACC(p, j, nb):
    idx = (p * 8 + j) * 4 + nb
    if idx < NVACC: return ('v', 48 + idx * 4)
    return ('a', 208 + (idx - NVACC) * 4)
def ACCS(p, j, nb):
    k, b = ACC(p, j, nb); return "%s[%d:%d]" % (k, b, b + 3)

V_XA = 1; V_WOFF = 5; V_OOFF = 6; V_DCUR = 7
V_T = 16
V_WTR = 46
S_XSRD = 4; S_WSRD = 8; S_OSRD = 12
S_XPTR = 16; S_OPTR = 18; S_WPTR = 20
S_WAVE = 22; S_MT = 23; S_NT = 24; S_WTMP = 25
S_M0 = 26; S_M0H = 27; S_WS = 28; S_WL = 29; S_CNT = 30
S_HEXEC = 32
S_T0 = 34
S_OBASE = 40; S_TILE = 41; S_C1 = 42; S_C2 = 43; S_TB = 44; S_OCOL = 45; S_ST = 46
S_SSRD = 48; S_SOFF = 52; S_WSP = 60
S_C3 = 47; S_HX = 31; S_WB0 = 62; S_WC = 76
XSCRATCH = 55296

DBG = os.environ.get("DBG") is not None
def dbg_start():
    if not DBG: return
    e("s_load_dwordx2 s[64:65], s[0:1], 24")
    e("s_memtime s[68:69]"); e("s_memrealtime s[70:71]"); e("s_waitcnt lgkmcnt(0)")
    e("s_mov_b32 s66, 256"); e("s_mov_b32 s67, 0x20000")
def dbg_end():
    if not DBG: return
    e("s_memtime s[72:73]"); e("s_memrealtime s[74:75]"); e("s_waitcnt lgkmcnt(0)")
    e("s_cmp_lg_u32 s%d, 0" % S_WAVE)
    e("s_cbranch_scc1 L_dbgend")
    e("s_sub_u32 s72, s72, s68")
    e("s_sub_u32 s73, s74, s70")
    e("s_not_b32 s70, s70")
    e("v_mov_b32 v40, s74"); e("v_mov_b32 v41, s70"); e("v_mov_b32 v42, s73"); e("v_mov_b32 v43, s72")
    e("s_mov_b64 exec, 1")
    e("buffer_atomic_umax v40, off, s[64:67], 0")
    e("buffer_atomic_umax v41, off, s[64:67], 0 offset:4")
    e("buffer_atomic_umax v42, off, s[64:67], 0 offset:8")
    e("buffer_atomic_umax v43, off, s[64:67], 0 offset:12")
    e("buffer_atomic_add v42, off, s[64:67], 0 offset:16")
    e("buffer_atomic_add v43, off, s[64:67], 0 offset:20")
    e("s_mov_b64 exec, -1")
    lab("L_dbgend")
_stn = [0]
NOSTAMP = [False]
def stamp():
    if not STAMP or NOSTAMP[0]: return
    _stn[0] += 1
    e("s_memtime s[56:57]"); e("s_memrealtime s[58:59]"); e("s_waitcnt lgkmcnt(0)")
    e("s_cmp_lg_u32 s%d, 0" % S_WAVE)
    e("s_cbranch_scc1 L_st%d" % _stn[0])
    for k in range(4): e("v_mov_b32 v%d, s%d" % (40 + k, 56 + k))
    e("s_mov_b64 exec, 1")
    e("buffer_store_dwordx4 v[40:43], off, s[%d:%d], s%d" % (S_SSRD, S_SSRD + 3, S_SOFF))
    e("s_mov_b64 exec, -1"); e("s_nop 1")
    lab("L_st%d" % _stn[0])
    e("s_add_u32 s%d, s%d, 16" % (S_SOFF, S_SOFF))

PRE = 6

class I:
    def __init__(self, t, tag=None, cls=None, needs=()):
        self.t = t; self.tag = tag; self.cls = cls; self.needs = list(needs)

MEMC = 4
def cost(ins):
    op = ins.t.split()[0]
    if op in ("v_exp_f32", "v_rcp_f32"): return (8, 8)
    if op.startswith("s_"): return (4, 0)
    return (4, 4)

def xread(ks, p, q, sl, tag):
    s = 1 if q >= 8 else 0
    c = (p + 2 * q) % 16
    return I("ds_read_b128 %s, v%d offset:%d" % (XREG(sl), V_XA + s * 2 + ks, c * CLS), tag, 'l')

def xsrd_tile_ins():
    ins = []
    ins.append(("s_cmp_ge_u32 s%d, 63" % S_T0, "s_cselect_b32 s%d, 63, 0" % (S_T0 + 1), "s_cselect_b32 s%d, %d, 0" % (S_T0 + 2, BATCHB)))
    ins.append(("s_sub_u32 s%d, s%d, s%d" % (S_T0 + 1, S_T0, S_T0 + 1),))
    ins.append(("s_add_u32 s%d, s%d, s%d" % (S_XSRD, S_XPTR, S_T0 + 2), "s_addc_u32 s%d, s%d, 0" % (S_XSRD + 1, S_XPTR + 1)))
    ins.append(("s_cmp_lt_u32 s%d, 126" % S_T0, "s_cselect_b32 s%d, %d, 0" % (S_XSRD + 2, BATCHB)))
    ins.append(("s_lshl_b32 s%d, s%d, 18" % (S_T0 + 1, S_T0 + 1),))
    ins.append(("s_sub_u32 s%d, s%d, s%d" % (S_T0 + 2, S_T0 + 1, S_TB),))
    ins.append(("s_mov_b32 s%d, s%d" % (S_TB, S_T0 + 1),))
    for k in range(9):
        ins.append(("v_add_u32 v%d, s%d, v%d" % (V_DCUR + k, S_T0 + 2, V_DCUR + k),))
    return ins

def xdma(k):
    ld = "buffer_load_dwordx4 v%d, s[%d:%d], 0 offen%s lds" % (V_DCUR + k, S_XSRD, S_XSRD + 3, XNT)
    m = ("s_add_u32 m0, s%d, %d" % (S_M0, k * 1024)) if k < 8 else ("s_mov_b32 m0, s%d" % S_M0H)
    return (I(m), I(ld, ('xd', k), 'v'))
XDMA_POST = [("s_add_u32 s%d, s%d, 128" % (S_XSRD, S_XSRD), "s_addc_u32 s%d, s%d, 0" % (S_XSRD + 1, S_XSRD + 1)),
             ("s_xor_b32 s%d, s%d, 0x%x" % (S_M0, S_M0, SLOT_XOR),),
             ("s_xor_b32 s%d, s%d, s%d" % (S_M0H, S_M0H, S_HX),)]

def wdma(sub, prev, tap, dh, hf):
    needs = [('wt', prev, tap, 2 * hf + b, t) for b in range(2) for t in range(2)] if prev else []
    return (I("s_add_u32 m0, s%d, %d" % (S_WL, tap * 4096 + dh * 2048)),
            I("buffer_load_dwordx4 v%d, s[%d:%d], s%d offen offset:%d lds" % (V_WOFF, S_WSRD, S_WSRD + 3, S_WC + tap * 2 + dh, hf * 1024),
              ('wd', sub, tap, dh, hf), 'v', needs))
def wtr(sub, st, tap, nb, t):
    b = WREGN(st, tap, nb) + 2 * t
    hf = nb >> 1
    return I("ds_read_b64_tr_b16 a[%d:%d], v%d offset:%d" % (b, b + 1, V_WTR, tap * 4096 + hf * 1024 + t * 256 + (nb & 1) * 8),
             ('wt', sub, tap, nb, t), 'l', [('wd', sub, tap, dh, hf) for dh in range(2)])
WADV = ("s_add_u32 s%d, s%d, 0x10000" % (S_WSRD, S_WSRD), "s_addc_u32 s%d, s%d, 0" % (S_WSRD + 1, S_WSRD + 1))
WRESET = ("s_mov_b32 s%d, s%d" % (S_WSRD, S_WB0), "s_mov_b32 s%d, s%d" % (S_WSRD + 1, S_WB0 + 1))

def epi_block(p, j, tb):
    sl = []
    regs = {}
    for nb in range(4):
        k, b = ACC(p, j, nb)
        for r in range(4): regs[(nb, r)] = (k, b + r)
    PK = tb
    for h in range(2):
        E = [tb + 4 + h * 8 + k for k in range(4)]
        G = [tb + 8 + h * 8 + k for k in range(4)]
        src = {}; rd = []
        for k in range(4):
            kind, r = regs[(h, k)]
            if kind == 'a':
                rd.append("v_accvgpr_read_b32 v%d, a%d" % (E[k], r)); r = E[k]
            src[('e', k)] = r
            kind, r = regs[(2 + h, k)]
            if kind == 'a':
                rd.append("v_accvgpr_read_b32 v%d, a%d" % (G[k], r)); r = G[k]
            src[('g', k)] = r
        for i in range(0, len(rd), 2): sl.append(tuple(rd[i:i + 2]))
        mulE = ["v_mul_f32 v%d, s%d, v%d" % (E[k], S_C1, src[('e', k)]) for k in range(4)]
        mulG = ["v_mul_f32 v%d, s%d, v%d" % (G[k], S_C2, src[('g', k)]) for k in range(4)]
        mn = ["v_min_f32 v%d, s%d, v%d" % (E[k], S_C3, E[k]) for k in range(4)]
        eG = ["v_exp_f32 v%d, v%d" % (G[k], G[k]) for k in range(4)]
        eE = ["v_exp_f32 v%d, v%d" % (E[k], E[k]) for k in range(4)]
        aG = ["v_add_f32 v%d, 1.0, v%d" % (G[k], G[k]) for k in range(4)]
        den = ["v_fmac_f32 v%d, v%d, v%d" % (G[k], E[k], G[k]) for k in range(4)]
        rc = ["v_rcp_f32 v%d, v%d" % (G[k], G[k]) for k in range(4)]
        fin = ["v_fma_f32 v%d, v%d, v%d, -v%d" % (E[k], E[k], G[k], G[k]) for k in range(4)]
        cv = ["v_cvt_pk_bf16_f32 v%d, v%d, v%d" % (PK + 2 * h + k, E[2 * k], E[2 * k + 1]) for k in range(2)]
        sl += [(mulG[0], mulG[1]), (mulG[2], mulG[3]), (mulE[0], mulE[1]), (eG[0],), (mulE[2], mulE[3]), (eG[1],),
               (mn[0], mn[1]), (eG[2],), (mn[2], mn[3]), (eG[3],), (eE[0],), (aG[0], aG[1]), (eE[1],), (aG[2], aG[3]),
               (eE[2],), (eE[3],), (den[0], den[1]), (den[2], den[3]), (rc[0],), (rc[1],), (rc[2],), (rc[3],),
               (fin[0], fin[1]), (fin[2], fin[3]), (cv[0], cv[1])]
    res = [[I(x) for x in s] for s in sl]
    res.append([I("s_add_u32 s%d, s%d, %d" % (S_ST, S_OBASE, (p + 2 * j) * 1024)),
                I("buffer_store_dwordx4 v[%d:%d], v%d, s[%d:%d], s%d offen" % (PK, PK + 3, V_OOFF, S_OSRD, S_OSRD + 3, S_ST), ('st', p, j), 'v')])
    return res
EPI_TB = V_T

def acc_reads(t):
    m = re.match(r"v_accvgpr_read_b32 v\d+, a(\d+)", t)
    if m: return ('a', int(m.group(1)))
    m = re.match(r"v_mul_f32 v\d+, s\d+, v(\d+)", t)
    if m and int(m.group(1)) >= 48: return ('v', int(m.group(1)))
    return None

WORDER = [(hf, tap) for hf in range(2) for tap in range(5)]

ALLNB = (0, 1, 2, 3); ALLT = (0, 1, 2, 3, 4)
def G(ks, p, lo=0, hi=8, nbs=ALLNB, taps=ALLT): return (ks, p, lo, hi, nbs, taps)
NAT = [G(0, 0), G(0, 1), G(1, 0), G(1, 1)]
REO = [G(0, 0), G(1, 0), G(0, 1), G(1, 1)]
PM = [G(ks, p, lo, lo + 4) for p in range(2) for lo in (0, 4) for ks in range(2)]
T1 = tuple(range(int(os.environ.get("CT1", "2"))))
T2 = tuple(range(len(T1), 5))
COLD = [G(0, 0, nbs=(0, 1), taps=T1), G(0, 1, nbs=(0, 1), taps=T1), G(0, 0, nbs=(0, 1), taps=T2), G(0, 1, nbs=(0, 1), taps=T2),
        G(0, 0, nbs=(2, 3)), G(0, 1, nbs=(2, 3)), G(1, 0), G(1, 1)]
PM7 = [G(0, 0, 0, 4), G(1, 0, 0, 4), G(0, 0, 4, 8), G(1, 0, 4, 8), G(0, 1), G(1, 1)]
REO2 = [G(0, 0), G(1, 0, 0, 4), G(0, 1), G(1, 0, 4, 8), G(1, 1)]
BLOCKS = [(p, j) for p in range(2) for j in range(8)]

def plan(groups, first=False, last=False, final=False, epi=None, b_dma_here=False, b_start=2, no_b2=False, cold=False, reserve=None, pf=False):
    mf = []; xuse = {}; wuse = {}; accw = {}
    seen = set()
    raw = []
    for g, (ks, p, lo, hi, gnb, gtaps) in enumerate(groups):
        for j in range(lo, hi):
            nbs = list(gnb) if j % 2 == 0 else list(gnb)[::-1]
            for ci, nb in enumerate(nbs):
                taps = list(gtaps) if ci % 2 == 0 else list(gtaps)[::-1]
                for i in taps:
                    zero = first and (p, j, nb) not in seen
                    seen.add((p, j, nb))
                    idx = len(raw)
                    raw.append((g, ks, p, j, nb, i, zero))
                    xuse.setdefault((g, j + i), []).append(idx)
                    wuse.setdefault((ks, i, nb), []).append(idx)
                    accw.setdefault((p, j, nb), []).append(idx)
    NMR = len(raw)
    slot = {}; sfree = {sl: 0 for sl in range(12)}
    frs = sorted(xuse.keys(), key=lambda t: min(xuse[t]))
    for (g, q) in frs:
        lu = max(xuse[(g, q)])
        if g == 0 and q < PRE: sl = q
        else:
            cand = list(range(12))
            if not final:
                if lu >= NMR - 44: cand = list(range(PRE, 12))
                elif lu >= NMR - 104: cand = list(range(PRE))
            sl = min(cand, key=lambda x: sfree[x])
        slot[(g, q)] = sl; sfree[sl] = lu + 1
    for (g, ks, p, j, nb, i, zero) in raw:
        acc = ACCS(p, j, nb)
        sub = 'A' if ks == 0 else 'B'
        mf.append(I("v_mfma_f32_16x16x32_bf16 %s, %s, %s, %s" % (acc, WREG(ks, i, nb), XREG(slot[(g, j + i)]), "0" if zero else acc),
                    needs=[('xr', g, j + i), ('wt', sub, i, nb, 0), ('wt', sub, i, nb, 1)]))
    NM = len(mf)
    gaps = [[] for _ in range(NM + 2)]
    used = [0] * (NM + 2); usedv = [0] * (NM + 2)
    for k_, c_ in (reserve or {}).items(): used[k_] += c_
    m0lock = set()
    def put(k, ins):
        c, v = cost(ins)
        gaps[k].append(ins); used[k] += c; usedv[k] += v
    def fits(k, c, v, cap=12, capv=8):
        return used[k] + c <= max(cap, c) and usedv[k] + v <= max(capv, v)
    def place(k, ins):
        tup = ins if isinstance(ins, tuple) else (ins,)
        tup = tuple(x if isinstance(x, I) else I(x) for x in tup)
        c = sum(cost(x)[0] for x in tup); v = sum(cost(x)[1] for x in tup)
        while not fits(k, c, v): k += 1
        for x in tup: put(k, x)
        return k
    def place_dma(k, pair):
        m, d = pair
        while not (k not in m0lock and k + 1 not in m0lock and fits(k, 4, 0) and fits(k + 1, 4, 4)): k += 1
        put(k, m); put(k + 1, d); m0lock.add(k); m0lock.add(k + 1)
        return k + 1
    slot_free = {}
    prev_k = 0
    for (g, q) in frs:
        sl = slot[(g, q)]
        if g == 0 and q < PRE:
            assert sl == q
        else:
            fu = min(xuse[(g, q)])
            k = place(max(slot_free.get(sl, 0), prev_k, fu - 60), xread(groups[g][0], groups[g][1], q, sl, ('xr', g, q)))
            assert k < fu - 5, (g, q, k, fu)
            prev_k = k
        slot_free[sl] = max(xuse[(g, q)]) + 1
    if not final:
        bar_gap = max(prev_k + 8, slot_free[0])
        put(bar_gap, I("s_barrier", needs=[('xd', k) for k in range(9)] + [('xr',) + t for t in frs]))
        kk = bar_gap + 1
        for a_ in range(4):
            kk = place(kk, "v_xor_b32 v%d, 0x%x, v%d" % (V_XA + a_, SLOT_XOR, V_XA + a_))
        for q in range(PRE):
            kk = place(max(kk, slot_free[q]), xread(0, 0, q, q, ('xr', 'n', q)))
        assert kk <= NM - 3, kk
    def trs(sub, st, start, tr_end, sp_from=None, regions=WORDER, ready=None, check=False):
        n_ = 4 * len(regions)
        sp = max(1, min(TRSP, (tr_end - (sp_from or start)) // n_))
        k = start; done = {}
        for (hf, tap) in regions:
            for b in range(2):
                nb = 2 * hf + b
                for t in range(2):
                    e0 = max(wuse[(st, tap, nb)]) + 1 if sub == 'A2' else 0
                    if ready: e0 = max(e0, ready.get((hf, tap), 0))
                    k = place(max(k, e0), wtr(sub, st, tap, nb, t))
                    if sub != 'A2': assert k < min(wuse[(st, tap, nb)]) - 4, (sub, tap, nb, k, min(wuse[(st, tap, nb)]))
                    done[(hf, tap)] = k
                    k += sp
        assert k - sp < NM - 2
        return done
    def dmas(nsub, prev, done, start, end, maxsp, regions=WORDER):
        at = {}
        n_ = 2 * len(regions)
        dsp = max(2.0, min(float(maxsp), (end - start) / float(n_)))
        i = 0; kl = start - 2; base = start
        for (hf, tap) in regions:
            for dh in range(2):
                tgt = int(base + i * dsp)
                rdy = done.get((hf, tap), -6) + 6
                if rdy > tgt:
                    base = rdy; dsp = max(2.0, min(float(maxsp), (end - rdy) / float(n_ - i))); base -= i * dsp; tgt = rdy
                kl = place_dma(max(tgt, kl + 1), wdma(nsub, prev, tap, dh, hf))
                at[(hf, tap)] = kl
                i += 1
        place(kl + 1, WADV)
        return at
    st1_first = min(min(v) for (ks, i, nb), v in wuse.items() if ks == 1)
    st0_first_free = min(max(v) for (ks, i, nb), v in wuse.items() if ks == 0) + 1
    st0_end = max(max(v) for (ks, i, nb), v in wuse.items() if ks == 0) + 1
    if cold:
        CSP = int(os.environ.get("CSP", "6")); CLAT = int(os.environ.get("CLAT", "70"))
        hf1 = [r for r in WORDER if r[0] == 1]
        aA = dmas('A', None, {}, 1, 1 + 10 * CSP, CSP, hf1)
        r2 = [(0, t) for t in T2]
        fu2 = min(min(wuse[(0, t, nb)]) for t in T2 for nb in (0, 1))
        dA = trs('A', 0, max(2, fu2 - 40), fu2 - 8, regions=r2)
        fu3 = min(min(wuse[(0, t, nb)]) for t in range(5) for nb in (2, 3))
        dA.update(trs('A', 0, max(aA.values()) + 20, fu3 - 6, regions=hf1, ready={r: aA[r] + CLAT for r in hf1}))
        aB = dmas('B', 'A', dA, max(aA.values()) + CSP, 9999, CSP)
        d1 = trs('B', 1, min(aB.values()) + CLAT, st1_first - 6, regions=WORDER, ready={r: aB[r] + CLAT for r in WORDER})
        k = max(max(aB.values()) + 4, d1[WORDER[0]] + 6)
        aA2 = dmas('A2', 'B', d1, k, 470, WSPACE)
        d2 = trs('A2', 0, min(aA2.values()) + CLAT, NM - 40, regions=WORDER, ready={r: aA2[r] + CLAT for r in WORDER})
        dmas('B2', 'A2', d2, max(max(aA2.values()) + 4, d2[WORDER[0]] + 6), NM - 24, WSPACE)
    else:
        if b_dma_here:
            dmas('B', 'A', {}, 1, b_start - 40, WSPACE)
        d1 = trs('B', 1, b_start, st1_first - 6)
    if not final:
        if not cold:
            k = d1[WORDER[0]] + 6
            if last: place(k - 3, WRESET)
            dmas('A2', 'B', d1, k, st0_end - 80, WSPACE)
            d2 = trs('A2', 0, st0_first_free, NM - 12 if no_b2 else NM - 70, st0_end)
            if not no_b2:
                dmas('B2', 'A2', d2, d2[WORDER[0]] + 6, NM - 24, WSPACE)
        k = int(os.environ.get("CX0", "170")) if cold else 7
        if last:
            k = place(k, "s_add_u32 s%d, s%d, 1" % (S_T0, S_MT))
            for s_ in xsrd_tile_ins(): k = place(k, s_)
            k += 2
        xsp = min(XSPACE, (bar_gap - XLAT - k) // 9)
        for kx in range(9):
            k = place_dma(k, xdma(kx)); kl = k
            k += xsp
        k = kl + 1
        for s_ in XDMA_POST: k = place(k, s_)
    if pf and PF:
        place(300, I("global_load_dword v44, v47, s[88:89]", ('pf',), 'v'))
    if epi:
        base_gaps = [list(g) for g in gaps]; base_used = list(used); base_usedv = list(usedv)
        done = False
        for num in range(0, 33):
            gaps[:] = [list(g) for g in base_gaps]; used[:] = base_used; usedv[:] = base_usedv
            def extra(k):
                if num <= 16: return 4 if (k * num) % 16 < num else 0
                return 8 if (k * (num - 16)) % 16 < (num - 16) else 4
            k = 0; ok = True
            for (which, p, j) in epi:
                if which == 'own':
                    k = max(k, max(max(accw[(p, j, nb)]) for nb in range(4)) + 9)
                for slt in epi_block(p, j, EPI_TB):
                    for ins in slt:
                        c, v = cost(ins)
                        while k < NM and not (used[k] + c <= 12 + extra(k) and usedv[k] + v <= 8 + extra(k)): k += 1
                        if k >= NM - 3: ok = False; break
                        put(k, ins)
                        ar = acc_reads(ins.t)
                        if which == 'prev' and ar is not None:
                            for nb in range(4):
                                kind, b = ACC(p, j, nb)
                                if kind == ar[0] and b <= ar[1] < b + 4 and k > min(accw[(p, j, nb)]): ok = False
                    if not ok: break
                if not ok: break
            if ok:
                sys.stderr.write("epilogue fill: num=%d ends at gap %d\n" % (num, k)); done = True; break
        assert done
    pos_ = {}
    for k in range(NM + 1):
        for ins in gaps[k]:
            if ins.tag: pos_[ins.tag] = k
    md = min([k - pos_[n] for k in range(NM + 1) for ins in gaps[k] for n in ins.needs if n[0] == 'wd' and n in pos_] + [9999])
    assert md >= 50, md
    seq = []
    assert not gaps[NM + 1]
    for k in range(NM + 1):
        items = [x for x in gaps[k] if x.t.startswith("s_")] + [x for x in gaps[k] if not x.t.startswith("s_")]
        if k < NM: items.append(mf[k])
        tags_here = set(x.tag for x in items if x.tag)
        needs = []
        for x in items:
            for n_ in x.needs:
                assert n_ not in tags_here
                needs.append(n_)
        for idx, x in enumerate(items):
            y = I(x.t, x.tag, x.cls, needs if idx == 0 else [])
            y.gap = k; seq.append(y)
    return seq

def rename_exit(q):
    r = []
    for t in q:
        if t[0] == 'xr': r.append(('xr', 0, t[2]) if t[1] == 'n' else ('old',))
        elif t[0] in ('wt', 'wd') and t[1] in ('A2', 'B2'): r.append((t[0], t[1][0]) + t[2:])
        else: r.append(('old',))
    return r

def simulate(seq, entry, forced=None):
    vq, lq = list(entry[0]), list(entry[1])
    issued = set(entry[2])
    waits = {}; pos = {}
    for i, ins in enumerate(seq):
        vm = lg = None
        for n in ins.needs:
            assert n in issued, ("need not issued", n, ins.t)
            if n in vq:
                c = len(vq) - 1 - vq.index(n); vm = c if vm is None else min(vm, c)
            if n in lq:
                c = len(lq) - 1 - lq.index(n); lg = c if lg is None else min(lg, c)
        g_ = getattr(ins, 'gap', None)
        if g_ is not None:
            if vm is not None:
                old_ = [j for j, t in enumerate(vq) if pos.get(t, -999) <= g_ - VOLD]
                if old_: vm = min(vm, len(vq) - 1 - max(old_))
            if lg is not None:
                old_ = [j for j, t in enumerate(lq) if pos.get(t, -999) <= g_ - LOLD]
                if old_: lg = min(lg, len(lq) - 1 - max(old_))
        if forced and i in forced:
            fv, fl = forced[i]
            if fv is not None: vm = fv if vm is None else min(vm, fv)
            if fl is not None: lg = fl if lg is None else min(lg, fl)
        if vm is not None:
            assert vm <= 63
            if vm < len(vq): vq = vq[len(vq) - vm:] if vm else []
        if lg is not None:
            lg = min(lg, 15)
            if lg < len(lq): lq = lq[len(lq) - lg:] if lg else []
        if vm is not None or lg is not None: waits[i] = (vm, lg)
        if ins.cls == 'v': vq.append(ins.tag)
        if ins.cls == 'l': lq.append(ins.tag)
        if ins.tag:
            issued.add(ins.tag); pos[ins.tag] = getattr(ins, 'gap', -999)
    return waits, (rename_exit(vq), rename_exit(lq), frozenset(t for t in rename_exit(sorted(issued, key=str)) if t != ('old',)))

def merge(w1, w2):
    r = dict(w1)
    for i, (v, l) in w2.items():
        if i in r:
            a, b = r[i]
            v2 = a if v is None else (v if a is None else min(a, v))
            l2 = b if l is None else (l if b is None else min(b, l))
            r[i] = (v2, l2)
        else: r[i] = (v, l)
    return r

def emit(seq, waits, stamps_at=()):
    nm = 0
    for i, ins in enumerate(seq):
        if ins.t.startswith("v_mfma"):
            if nm in stamps_at: stamp()
            nm += 1
        if i in waits:
            v, l = waits[i]
            w = []
            if v is not None: w.append("vmcnt(%d)" % v)
            if l is not None: w.append("lgkmcnt(%d)" % l)
            e("s_waitcnt " + " ".join(w))
        if ins.t == "STAMP": stamp()
        else: e(ins.t)
    return
def emit_old(seq, waits):
    for i, ins in enumerate(seq):
        if i in waits:
            v, l = waits[i]
            w = []
            if v is not None: w.append("vmcnt(%d)" % v)
            if l is not None: w.append("lgkmcnt(%d)" % l)
            e("s_waitcnt " + " ".join(w))
        e(ins.t)

def out_tile_list(smt):
    return ["s_cmp_ge_u32 s%d, 63" % smt,
            "s_cselect_b32 s%d, 63, 0" % (S_T0 + 1),
            "s_cselect_b32 s%d, %d, 0" % (S_T0 + 2, BATCHB),
            "s_sub_u32 s%d, s%d, s%d" % (S_T0 + 1, smt, S_T0 + 1),
            "s_add_u32 s%d, s%d, s%d" % (S_OSRD, S_OPTR, S_T0 + 2),
            "s_addc_u32 s%d, s%d, 0" % (S_OSRD + 1, S_OPTR + 1),
            "s_lshl_b32 s%d, s%d, 18" % (S_OBASE, S_T0 + 1),
            "s_add_u32 s%d, s%d, s%d" % (S_OBASE, S_OBASE, S_OCOL)]

NE7 = int(os.environ.get("NE7", "10"))
NE7F = int(os.environ.get("NE7F", "10"))
def main_kernel():
    K = NAME + "_kernel"
    out.append(".globl " + K); out.append(".p2align 8"); out.append(".type %s,@function" % K)
    lab(K)
    e("s_load_dwordx4 s[%d:%d], s[0:1], 0" % (S_XPTR, S_XPTR + 3))
    e("s_load_dwordx2 s[%d:%d], s[0:1], 16" % (S_WPTR, S_WPTR + 1))
    if STAMP: e("s_load_dwordx2 s[%d:%d], s[0:1], 32" % (S_WSP, S_WSP + 1))
    e("s_cmp_ge_u32 s2, 256")
    e("s_cbranch_scc1 L_done")
    e("s_and_b32 s%d, s2, 7" % S_T0)
    e("s_lshr_b32 s%d, s2, 3" % (S_T0 + 1))
    if MAPPING == 0:
        e("s_and_b32 s%d, s%d, 3" % (S_NT, S_T0 + 1))
        e("s_lshr_b32 s%d, s%d, 2" % (S_T0 + 1, S_T0 + 1))
        e("s_lshl_b32 s%d, s%d, 3" % (S_T0 + 1, S_T0 + 1))
        e("s_add_u32 s%d, s%d, s%d" % (S_T0, S_T0, S_T0 + 1))
    elif MAPPING == 2:
        e("s_and_b32 s%d, s%d, 1" % (S_NT, S_T0))
        e("s_lshl_b32 s%d, s%d, 1" % (S_NT, S_NT))
        e("s_and_b32 s%d, s%d, 1" % (S_T0 + 2, S_T0 + 1))
        e("s_add_u32 s%d, s%d, s%d" % (S_NT, S_NT, S_T0 + 2))
        e("s_lshr_b32 s%d, s%d, 1" % (S_T0, S_T0))
        e("s_lshr_b32 s%d, s%d, 1" % (S_T0 + 1, S_T0 + 1))
        e("s_lshl_b32 s%d, s%d, 2" % (S_T0 + 1, S_T0 + 1))
        e("s_add_u32 s%d, s%d, s%d" % (S_T0, S_T0, S_T0 + 1))
    e("s_cmp_ge_u32 s%d, 63" % S_T0)
    e("s_cbranch_scc1 L_done")
    e("s_lshl_b32 s%d, s%d, 1" % (S_MT, S_T0))
    if PF:
        e("s_getpc_b64 s[86:87]")
        lab("L_pc")
        e("s_add_u32 s88, s86, L_c7-L_pc")
        e("s_addc_u32 s89, s87, 0")
        e("s_add_u32 s86, s86, L_c0-L_pc")
        e("s_addc_u32 s87, s87, 0")
        e("v_lshlrev_b32 v47, 7, v0")
        e("v_lshrrev_b32 v45, 1, v47")
        e("global_load_dword v44, v45, s[86:87]")
    e("v_lshrrev_b32 v%d, 6, v0" % V_T)
    e("v_and_b32 v%d, 63, v0" % (V_T + 1))
    L = V_T + 1
    e("v_lshrrev_b32 v%d, 2, v%d" % (V_WOFF, L))
    e("v_readfirstlane_b32 s%d, v%d" % (S_WAVE, V_T))
    e("v_lshlrev_b32 v%d, 11, v%d" % (V_WOFF, V_WOFF))
    e("v_and_b32 v%d, 3, v%d" % (V_T + 2, L))
    e("v_lshl_add_u32 v%d, v%d, 4, v%d" % (V_WOFF, V_T + 2, V_WOFF))
    SG = V_T + 2; PI = V_T + 3; C = V_T + 4; MP = V_T + 5; F = V_T + 6; SG0 = V_T + 7
    e("v_lshrrev_b32 v%d, 3, v%d" % (SG0, L))
    e("v_and_b32 v%d, 7, v%d" % (PI, L))
    e("s_lshl_b32 s%d, s%d, 2" % (S_T0, S_NT))
    e("s_add_u32 s%d, s%d, s%d" % (S_T0, S_T0, S_WAVE))
    e("s_lshl_b32 s%d, s%d, 6" % (S_OCOL, S_T0))
    e("s_mul_i32 s%d, s%d, 20480" % (S_WL, S_WAVE))
    e("s_add_u32 s%d, s%d, %d" % (S_WL, S_WL, WL1 - 20480))
    e("s_cmp_eq_u32 s%d, 0" % S_WAVE)
    e("s_cselect_b32 s%d, %d, s%d" % (S_WL, WL0, S_WL))
    e("s_mov_b32 s%d, %d" % (S_WSRD + 2, WPB))
    e("s_mov_b32 s%d, 0x20000" % (S_WSRD + 3))
    e("s_mov_b32 s%d, 0x20000" % (S_XSRD + 3))
    for tap in range(5):
        for dh in range(2): e("s_mov_b32 s%d, %d" % (S_WC + tap * 2 + dh, tap * 1048576 + dh * 32768))
    e("s_lshl_b32 s%d, s%d, 6" % (S_T0 + 3, S_WAVE))
    e("s_lshl_b32 s%d, s%d, 3" % (S_T0 + 4, S_WAVE))
    e("s_add_u32 s%d, s%d, 256" % (S_T0 + 4, S_T0 + 4))
    e("s_lshl_b32 s%d, s%d, 13" % (S_M0, S_WAVE))
    e("s_lshl_b32 s%d, s%d, 10" % (S_M0H, S_WAVE))
    e("s_cmp_lt_u32 s%d, 2" % S_WAVE)
    e("s_mov_b32 s%d, %d" % (S_T0, XSCRATCH - 2048))
    e("s_cselect_b32 s%d, 0x8000, s%d" % (S_T0, S_T0))
    e("s_cselect_b32 s%d, 0x%x, 0" % (S_HX, SLOT_XOR))
    e("s_cselect_b32 s%d, 0, 0x80000000" % S_HEXEC)
    e("s_add_u32 s%d, s%d, s%d" % (S_M0H, S_M0H, S_T0))
    e("s_cmp_ge_u32 s%d, 63" % S_MT)
    e("s_cselect_b32 s%d, 63, 0" % (S_T0 + 1))
    e("s_cselect_b32 s%d, %d, 0" % (S_T0 + 5, BATCHB))
    e("s_sub_u32 s%d, s%d, s%d" % (S_T0 + 1, S_MT, S_T0 + 1))
    e("s_lshl_b32 s%d, s%d, 18" % (S_TB, S_T0 + 1))
    e("s_sub_u32 s%d, s%d, 0x2000" % (S_T0 + 2, S_TB))
    e("s_mov_b32 s%d, %d" % (S_XSRD + 2, BATCHB))
    for k in range(9):
        if k < 8:
            e("v_add_u32 v%d, s%d, v%d" % (SG, S_T0 + 3, SG0))
            e("s_add_u32 s%d, s%d, 8" % (S_T0 + 3, S_T0 + 3))
        else:
            e("v_add_u32 v%d, s%d, v%d" % (SG, S_T0 + 4, SG0))
        e("v_mul_u32_u24 v%d, 241, v%d" % (C, SG))
        e("v_lshrrev_b32 v%d, 12, v%d" % (C, C))
        e("v_mul_u32_u24 v%d, 17, v%d" % (MP, C))
        e("v_sub_u32 v%d, v%d, v%d" % (MP, SG, MP))
        e("v_bfe_u32 v%d, v%d, 1, 3" % (F, MP))
        e("v_xor_b32 v%d, v%d, v%d" % (F, F, PI))
        e("v_lshl_add_u32 v%d, v%d, 4, v%d" % (C, MP, C))
        e("v_lshlrev_b32 v%d, 4, v%d" % (F, F))
        e("v_lshl_add_u32 v%d, v%d, 10, v%d" % (V_DCUR + k, C, F))
        e("v_add_u32 v%d, s%d, v%d" % (V_DCUR + k, S_T0 + 2, V_DCUR + k))
    e("v_lshrrev_b32 v%d, 1, v%d" % (C, V_DCUR + 8))
    e("v_or_b32 v%d, s%d, v%d" % (C, S_HEXEC, C))
    e("s_cmp_lt_u32 s%d, 2" % S_WAVE)
    e("s_cselect_b64 vcc, -1, 0")
    e("v_cndmask_b32 v%d, v%d, v%d, vcc" % (V_DCUR + 8, C, V_DCUR + 8))
    e("s_waitcnt lgkmcnt(0)")
    e("s_add_u32 s%d, s%d, s%d" % (S_XSRD, S_XPTR, S_T0 + 5))
    e("s_addc_u32 s%d, s%d, 0" % (S_XSRD + 1, S_XPTR + 1))
    e("s_add_u32 s%d, s%d, s%d" % (S_WB0, S_XPTR + 2, S_OCOL))
    e("s_addc_u32 s%d, s%d, 0" % (S_WB0 + 1, S_XPTR + 3))
    e("s_mov_b32 s%d, s%d" % (S_WSRD, S_WB0))
    e("s_mov_b32 s%d, s%d" % (S_WSRD + 1, S_WB0 + 1))
    if STAMP:
        e("s_add_u32 s%d, s%d, 0x800000" % (S_SSRD, S_WSP))
        e("s_addc_u32 s%d, s%d, 0" % (S_SSRD + 1, S_WSP + 1))
        e("s_mov_b32 s%d, 0x40000" % (S_SSRD + 2))
        e("s_mov_b32 s%d, 0x20000" % (S_SSRD + 3))
        e("s_lshl_b32 s%d, s2, 9" % S_SOFF)
    stamp()
    dbg_start()
    pro = []
    def P(x):
        for y in (x if isinstance(x, tuple) else (x,)): pro.append(y if isinstance(y, I) else I(y))
    wd = [wdma('A2', None, tap, dh, hf) for (hf, tap) in WORDER for dh in range(2)]
    def PD(pair): P(pair[0]); P("s_nop 0"); P(pair[1])
    if os.environ.get("TOUCH"):
        A = V_T + 10
        P("s_add_u32 s%d, s%d, s%d" % (S_T0, S_XSRD, S_TB))
        P("s_addc_u32 s%d, s%d, 0" % (S_T0 + 1, S_XSRD + 1))
        P("v_mov_b32 v%d, s%d" % (A, S_T0))
        P("v_mov_b32 v%d, s%d" % (A + 1, S_T0 + 1))
        for tap in range(5):
            P("s_add_u32 s%d, s%d, %d" % (S_T0, S_WB0, tap * 1048576))
            P("s_addc_u32 s%d, s%d, 0" % (S_T0 + 1, S_WB0 + 1))
            P("v_writelane_b32 v%d, s%d, %d" % (A, S_T0, tap + 1))
            P("v_writelane_b32 v%d, s%d, %d" % (A + 1, S_T0 + 1, tap + 1))
        if os.environ.get("TOUCH") == "2":
            P("s_add_u32 s%d, s%d, s%d" % (S_T0, S_WPTR, S_T0 + 5))
            P("s_addc_u32 s%d, s%d, 0" % (S_T0 + 1, S_WPTR + 1))
            P("s_add_u32 s%d, s%d, s%d" % (S_T0, S_T0, S_TB))
            P("s_addc_u32 s%d, s%d, 0" % (S_T0 + 1, S_T0 + 1))
            P("v_writelane_b32 v%d, s%d, 6" % (A, S_T0))
            P("v_writelane_b32 v%d, s%d, 6" % (A + 1, S_T0 + 1))
        P(I("global_load_dword v%d, v[%d:%d], off" % (A + 2, A, A + 1), ('touch',), 'v'))
    for k in range(9): PD(xdma(k))
    for k in range(10): PD(wd[k])
    for s_ in XDMA_POST: P(s_)
    P("s_mov_b32 s%d, s%d" % (S_OPTR, S_WPTR))
    P("s_mov_b32 s%d, s%d" % (S_OPTR + 1, S_WPTR + 1))
    M = V_T + 2; KQ = V_T + 3; TMP = V_T + 4; TMP2 = V_T + 5; TMP3 = V_T + 6
    P("v_and_b32 v%d, 15, v%d" % (M, L))
    P("v_lshrrev_b32 v%d, 4, v%d" % (KQ, L))
    P("v_lshrrev_b32 v%d, 1, v%d" % (TMP, KQ))
    P("v_lshlrev_b32 v%d, 11, v%d" % (TMP, TMP))
    P("v_and_b32 v%d, 1, v%d" % (TMP2, KQ))
    P("v_lshl_add_u32 v%d, v%d, 9, v%d" % (TMP, TMP2, TMP))
    P("v_lshl_add_u32 v%d, v%d, 4, v%d" % (TMP, M, TMP))
    P("v_add_u32 v%d, s%d, v%d" % (V_WTR, S_WL, TMP))
    P("v_lshlrev_b32 v%d, 14, v%d" % (V_OOFF, M))
    P("v_lshl_add_u32 v%d, v%d, 4, v%d" % (V_OOFF, KQ, V_OOFF))
    for s in range(2):
        for ks in range(2):
            dst = V_XA + s * 2 + ks
            P("v_add_u32 v%d, %d, v%d" % (TMP, s, M))
            P("v_bfe_u32 v%d, v%d, 1, 3" % (TMP2, TMP))
            P("v_add_u32 v%d, %d, v%d" % (TMP3, 4 * ks, KQ))
            P("v_xor_b32 v%d, v%d, v%d" % (TMP2, TMP2, TMP3))
            P("v_lshlrev_b32 v%d, 4, v%d" % (TMP2, TMP2))
            P("v_lshl_add_u32 v%d, v%d, 7, v%d" % (dst, TMP, TMP2))
    P("s_mov_b32 s%d, 0x4038aa3b" % S_C1)
    P("s_mov_b32 s%d, 0xbfb8aa3b" % S_C2)
    P("s_mov_b32 s%d, 0x41f00000" % S_C3)
    P("s_mov_b32 s%d, 0" % S_TILE)
    P("s_mov_b32 s%d, 0x20000" % (S_OSRD + 3))
    P("s_mov_b32 s%d, %d" % (S_OSRD + 2, BATCHB))
    for s_ in out_tile_list(S_MT): P(s_)
    P(I("s_barrier", needs=[('xd', k) for k in range(9)]))
    for q in range(PRE): P(xread(0, 0, q, q, ('xr', 'n', q)))
    for tap in T1:
        for nb in range(2):
            for t in range(2): P(wtr('A2', 0, tap, nb, t))
    w, st_pro = simulate(pro, ([('old',)] if PF else [], [], frozenset()))
    emit(pro, w)
    stamp()
    if os.environ.get("PROST"): NOSTAMP[0] = True
    BST = int(os.environ.get("BSTART", "120"))
    res = [{} for _ in range(5)]
    for outer in range(8):
        c0 = plan(COLD, first=True, cold=True, reserve=res[0])
        mid = plan(NAT, reserve=res[1], pf=True)
        c7 = plan(PM7, last=True, epi=[('own',) + b for b in BLOCKS[:NE7]], reserve=res[2])
        c0p = plan(REO2 if os.environ.get('NOREO2') is None else REO, first=True, b_start=int(os.environ.get('B0P', '40')), epi=[('prev',) + b for b in BLOCKS[NE7:]], reserve=res[3])
        c7f = plan(PM, final=True, epi=[('own',) + b for b in BLOCKS[:NE7F]], reserve=res[4])
        w0, x0 = simulate(c0, st_pro)
        wm = {}; w7 = {}; w0p = {}; w7f = {}
        entries_mid = [x0]
        for it in range(6):
            wm_new = {}
            for en in entries_mid:
                w_, _ = simulate(mid, en, wm); wm_new = merge(wm_new, w_)
            exits = [simulate(mid, en, wm_new)[1] for en in entries_mid]
            w7n = {}
            for en in exits:
                w7n = merge(w7n, simulate(c7, en, w7)[0]); w7f = merge(w7f, simulate(c7f, en, w7f)[0])
            x7 = [simulate(c7, en, w7n)[1] for en in exits]
            w0n = {}
            for en in x7: w0n = merge(w0n, simulate(c0p, en, w0p)[0])
            x0p = [simulate(c0p, en, w0n)[1] for en in x7]
            new_entries = []
            for en in [x0] + exits + x0p:
                if en not in new_entries: new_entries.append(en)
            stable = (wm_new == wm and w7n == w7 and w0n == w0p and len(new_entries) == len(entries_mid))
            wm, w7, w0p, entries_mid = wm_new, w7n, w0n, new_entries
            if stable: break
        assert stable
        changed = False
        rep = []
        for r_, sq, wt in zip(res, (c0, mid, c7, c0p, c7f), (w0, wm, w7, w0p, w7f)):
            tot = {}
            for i, ins in enumerate(sq):
                if not ins.t.startswith("v_mfma"): tot[ins.gap] = tot.get(ins.gap, 0) + cost(ins)[0]
                if i in wt: tot[ins.gap] = tot.get(ins.gap, 0) + 4
            over = sum(max(0, v - 12) for v in tot.values())
            rep.append((over, len(wt)))
            for i in wt:
                g_ = sq[i].gap
                if tot[g_] > 12 and g_ not in r_:
                    r_[g_] = 4; changed = True
        sys.stderr.write("outer %d overflow/waits %s\n" % (outer, rep))
        if not changed: break
    lab("L_c0")
    cm("chunk 0 (tile 0)")
    C0ST = os.environ.get("C0ST") is not None
    emit(c0, w0, (5, 20, 80, 160, 320, 480) if C0ST else ())
    if C0ST:
        stamp()
        NOSTAMP[0] = True
    lab("L_tile")
    e("s_mov_b32 s%d, 6" % S_CNT)
    out.append(".p2align 6")
    lab("L_mid")
    if os.environ.get("LOOPST"): stamp()
    emit(mid, wm)
    e("s_sub_u32 s%d, s%d, 1" % (S_CNT, S_CNT))
    e("s_cmp_lg_u32 s%d, 0" % S_CNT)
    e("s_cbranch_scc1 L_mid")
    stamp()
    e("s_cmp_lg_u32 s%d, 0" % S_TILE)
    e("s_cbranch_scc1 L_final")
    lab("L_c7")
    cm("chunk 7 (tile 0)")
    emit(c7, w7)
    stamp()
    e("s_mov_b32 s%d, 1" % S_TILE)
    cm("chunk 0 (tile 1)")
    emit(c0p, w0p)
    e("s_add_u32 s%d, s%d, 1" % (S_MT, S_MT))
    for s_ in out_tile_list(S_MT): e(s_)
    stamp()
    e("s_branch L_tile")
    lab("L_final")
    cm("chunk 7 (tile 1)")
    emit(c7f, w7f)
    stamp()
    cm("exposed epilogue")
    e("s_nop 7")
    for (p, j) in BLOCKS[NE7F:]:
        for slt in epi_block(p, j, EPI_TB):
            for ins in slt: e(ins.t)
        e("s_nop 1")
    stamp()
    e("s_waitcnt vmcnt(0)")
    dbg_end()
    e("s_waitcnt vmcnt(0) lgkmcnt(0)")
    lab("L_done")
    e("s_endpgm")

hdr = open("cdna_kernels/%s.s.ref" % NAME).read().split("\n")
for l in hdr:
    if l.startswith(";") and "@launch" not in l and "Override" not in l and "grid=ceil" not in l:
        out.append(l)
out.append("; @launch grid=(256,1,1) block=(256,1,1) lds=%d" % LDS_BYTES)
out.append('.amdgcn_target "amdgcn-amd-amdhsa--gfx950"')
out.append(".text")
main_kernel()
out.append('.section .rodata,"a"')
out.append(".p2align 6")
out.append(".amdhsa_kernel %s_kernel" % NAME)
out += ["  .amdhsa_next_free_vgpr 512", "  .amdhsa_next_free_sgpr 96", "  .amdhsa_accum_offset 256",
        "  .amdhsa_group_segment_fixed_size 0", "  .amdhsa_kernarg_size 40", "  .amdhsa_user_sgpr_count 2",
        "  .amdhsa_user_sgpr_kernarg_segment_ptr 1", "  .amdhsa_system_sgpr_workgroup_id_x 1", ".end_amdhsa_kernel"]
dst = sys.argv[1] if len(sys.argv) > 1 else "cdna_kernels/%s.s" % NAME
open(dst, "w").write("\n".join(out) + "\n")
print("wrote", dst, len(out), "lines")
```

```python
import sys, os, re, copy

NAME = "standalone__autoregressive_conv_wavernn__speech"
T = 16000
BATCHB = T * 1024
WPB = 5 * 512 * 1024 * 2
SLOT_XOR = 0x10000
CLS = 17 * 128
WL0 = 34816
WL1 = 0x10000 + 34816
LDS_BYTES = WL1 + 3 * 20480
STAMP = os.environ.get("STAMP") is not None
MAPPING = int(os.environ.get("MAPPING", "0"))
CAP = int(os.environ.get("CAP", "8"))
WSPACE = int(os.environ.get("WSPACE", "13"))
XSPACE = int(os.environ.get("XSPACE", "36"))
XLAT = int(os.environ.get("XLAT", "150"))
TRSP = int(os.environ.get("TRSP", "3"))
VOLD = int(os.environ.get("VOLD", "120"))
LOLD = int(os.environ.get("LOLD", "12"))
PF = os.environ.get("NOPF") is None
XNT = "" if os.environ.get("NOXNT") else " nt"

out = []
def e(s): out.append("    " + s)
def lab(s): out.append(s + ":")
def cm(s): out.append("    ; " + s)

def WREGN(st, tap, nb): return st * 80 + (tap * 4 + nb) * 4
def WREG(st, tap, nb):
    b = WREGN(st, tap, nb); return "a[%d:%d]" % (b, b + 3)
def XREG(q):
    b = 160 + q * 4; return "a[%d:%d]" % (b, b + 3)
NVACC = 52
def ACC(p, j, nb):
    idx = (p * 8 + j) * 4 + nb
    if idx < NVACC: return ('v', 48 + idx * 4)
    return ('a', 208 + (idx - NVACC) * 4)
def ACCS(p, j, nb):
    k, b = ACC(p, j, nb); return "%s[%d:%d]" % (k, b, b + 3)

V_XA = 1; V_WOFF = 5; V_OOFF = 6; V_DCUR = 7
V_T = 16
V_WTR = 46
S_XSRD = 4; S_WSRD = 8; S_OSRD = 12
S_XPTR = 16; S_OPTR = 20
S_WAVE = 22; S_NT = 24; S_DC = 25
S_DSRD = 64; S_NB = 68; S_NTB = 69; S_NOCOL = 70; S_K = 71; S_SMALL = 72; S_DELTA = 73
S_DW = 23; S_PREF = 74; S_XCC = 75
NSLOW = int(os.environ.get('NSLOW', '3'))
V_MP = 36; V_TMP = 38; V_M = 39; V_RANK = 45
RANK_LDS = 57344
S_M0 = 26; S_M0H = 27; S_WS = 28; S_WL = 29; S_CNT = 30
S_HEXEC = 32
S_T0 = 34
S_OBASE = 40; S_TILE = 41; S_C1 = 42; S_C2 = 43; S_TB = 44; S_OCOL = 45; S_ST = 46
S_SSRD = 48; S_SOFF = 52; S_WSP = 60
S_C3 = 47; S_HX = 31; S_WB0 = 62; S_WC = 76
XSCRATCH = 55296

_stn = [0]
NOSTAMP = [False]
def stamp():
    if not STAMP or NOSTAMP[0]: return
    _stn[0] += 1
    e("s_memtime s[56:57]"); e("s_memrealtime s[58:59]"); e("s_waitcnt lgkmcnt(0)")
    e("s_cmp_lg_u32 s%d, 0" % S_WAVE)
    e("s_cbranch_scc1 L_st%d" % _stn[0])
    for k in range(4): e("v_mov_b32 v%d, s%d" % (40 + k, 56 + k))
    e("s_mov_b64 exec, 1")
    e("buffer_store_dwordx4 v[40:43], off, s[%d:%d], s%d" % (S_SSRD, S_SSRD + 3, S_SOFF))
    e("s_mov_b64 exec, -1"); e("s_nop 1")
    lab("L_st%d" % _stn[0])
    e("s_add_u32 s%d, s%d, 16" % (S_SOFF, S_SOFF))

PRE = 6

class I:
    def __init__(self, t, tag=None, cls=None, needs=()):
        self.t = t; self.tag = tag; self.cls = cls; self.needs = list(needs)

MEMC = 4
def cost(ins):
    op = ins.t.split()[0]
    if op in ("v_exp_f32", "v_rcp_f32"): return (8, 8)
    if op.startswith("s_"): return (4, 0)
    return (4, 4)

def xread(ks, p, q, sl, tag, S=16):
    r = p + 2 * q
    s = 1 if r >= S else 0
    c = r - S * s
    return I("ds_read_b128 %s, v%d offset:%d" % (XREG(sl), V_XA + s * 2 + ks, c * CLS), tag, 'l')

def xsrd_tile_ins():
    ins = []
    ins.append(("s_add_u32 s%d, s%d, s%d" % (S_XSRD, S_XPTR, S_NB), "s_addc_u32 s%d, s%d, 0" % (S_XSRD + 1, S_XPTR + 1)))
    for k in range(9):
        ins.append(("v_bfe_u32 v%d, v%d, %d, 5" % (V_TMP, V_MP + k // 6, 5 * (k % 6)),
                    "v_mad_i32_i24 v%d, v%d, s%d, v%d" % (V_DCUR + k, V_TMP, S_K, V_DCUR + k)))
        ins.append(("v_add_u32 v%d, s%d, v%d" % (V_DCUR + k, S_DELTA, V_DCUR + k),))
    return ins

def xdma(k):
    ld = "buffer_load_dwordx4 v%d, s[%d:%d], 0 offen%s lds" % (V_DCUR + k, S_XSRD, S_XSRD + 3, XNT)
    m = ("s_add_u32 m0, s%d, %d" % (S_M0, k * 1024)) if k < 8 else ("s_mov_b32 m0, s%d" % S_M0H)
    return (I(m), I(ld, ('xd', k), 'v'))
XDMA_POST = [("s_add_u32 s%d, s%d, 128" % (S_XSRD, S_XSRD), "s_addc_u32 s%d, s%d, 0" % (S_XSRD + 1, S_XSRD + 1)),
             ("s_xor_b32 s%d, s%d, 0x%x" % (S_M0, S_M0, SLOT_XOR),),
             ("s_xor_b32 s%d, s%d, s%d" % (S_M0H, S_M0H, S_HX),)]

def wdma(sub, prev, tap, dh, hf):
    needs = [('wt', prev, tap, 2 * hf + b, t) for b in range(2) for t in range(2)] if prev else []
    return (I("s_add_u32 m0, s%d, %d" % (S_WL, tap * 4096 + dh * 2048)),
            I("buffer_load_dwordx4 v%d, s[%d:%d], s%d offen offset:%d lds" % (V_WOFF, S_WSRD, S_WSRD + 3, S_WC + tap * 2 + dh, hf * 1024),
              ('wd', sub, tap, dh, hf), 'v', needs))
def wtr(sub, st, tap, nb, t):
    b = WREGN(st, tap, nb) + 2 * t
    hf = nb >> 1
    return I("ds_read_b64_tr_b16 a[%d:%d], v%d offset:%d" % (b, b + 1, V_WTR, tap * 4096 + hf * 1024 + t * 256 + (nb & 1) * 8),
             ('wt', sub, tap, nb, t), 'l', [('wd', sub, tap, dh, hf) for dh in range(2)])
WADV = ("s_add_u32 s%d, s%d, 0x10000" % (S_WSRD, S_WSRD), "s_addc_u32 s%d, s%d, 0" % (S_WSRD + 1, S_WSRD + 1))
WRESET = ("s_mov_b32 s%d, s%d" % (S_WSRD, S_WB0), "s_mov_b32 s%d, s%d" % (S_WSRD + 1, S_WB0 + 1))

def epi_block(p, j, tb):
    sl = []
    regs = {}
    for nb in range(4):
        k, b = ACC(p, j, nb)
        for r in range(4): regs[(nb, r)] = (k, b + r)
    PK = tb
    for h in range(2):
        E = [tb + 4 + h * 8 + k for k in range(4)]
        G = [tb + 8 + h * 8 + k for k in range(4)]
        src = {}; rd = []
        for k in range(4):
            kind, r = regs[(h, k)]
            if kind == 'a':
                rd.append("v_accvgpr_read_b32 v%d, a%d" % (E[k], r)); r = E[k]
            src[('e', k)] = r
            kind, r = regs[(2 + h, k)]
            if kind == 'a':
                rd.append("v_accvgpr_read_b32 v%d, a%d" % (G[k], r)); r = G[k]
            src[('g', k)] = r
        for i in range(0, len(rd), 2): sl.append(tuple(rd[i:i + 2]))
        mulE = ["v_mul_f32 v%d, s%d, v%d" % (E[k], S_C1, src[('e', k)]) for k in range(4)]
        mulG = ["v_mul_f32 v%d, s%d, v%d" % (G[k], S_C2, src[('g', k)]) for k in range(4)]
        mn = ["v_min_f32 v%d, s%d, v%d" % (E[k], S_C3, E[k]) for k in range(4)]
        eG = ["v_exp_f32 v%d, v%d" % (G[k], G[k]) for k in range(4)]
        eE = ["v_exp_f32 v%d, v%d" % (E[k], E[k]) for k in range(4)]
        aG = ["v_add_f32 v%d, 1.0, v%d" % (G[k], G[k]) for k in range(4)]
        den = ["v_fmac_f32 v%d, v%d, v%d" % (G[k], E[k], G[k]) for k in range(4)]
        rc = ["v_rcp_f32 v%d, v%d" % (G[k], G[k]) for k in range(4)]
        fin = ["v_fma_f32 v%d, v%d, v%d, -v%d" % (E[k], E[k], G[k], G[k]) for k in range(4)]
        cv = ["v_cvt_pk_bf16_f32 v%d, v%d, v%d" % (PK + 2 * h + k, E[2 * k], E[2 * k + 1]) for k in range(2)]
        sl += [(mulG[0], mulG[1]), (mulG[2], mulG[3]), (mulE[0], mulE[1]), (eG[0],), (mulE[2], mulE[3]), (eG[1],),
               (mn[0], mn[1]), (eG[2],), (mn[2], mn[3]), (eG[3],), (eE[0],), (aG[0], aG[1]), (eE[1],), (aG[2], aG[3]),
               (eE[2],), (eE[3],), (den[0], den[1]), (den[2], den[3]), (rc[0],), (rc[1],), (rc[2],), (rc[3],),
               (fin[0], fin[1]), (fin[2], fin[3]), (cv[0], cv[1])]
    res = [[I(x) for x in s] for s in sl]
    res.append([I("s_add_u32 s%d, s%d, %d" % (S_ST, S_OBASE, (p + 2 * j) * 1024)),
                I("buffer_store_dwordx4 v[%d:%d], v%d, s[%d:%d], s%d offen" % (PK, PK + 3, V_OOFF, S_OSRD, S_OSRD + 3, S_ST), ('st', p, j), 'v')])
    return res
EPI_TB = V_T

def acc_reads(t):
    m = re.match(r"v_accvgpr_read_b32 v\d+, a(\d+)", t)
    if m: return ('a', int(m.group(1)))
    m = re.match(r"v_mul_f32 v\d+, s\d+, v(\d+)", t)
    if m and int(m.group(1)) >= 48: return ('v', int(m.group(1)))
    return None

WORDER = [(hf, tap) for hf in range(2) for tap in range(5)]

ALLNB = (0, 1, 2, 3); ALLT = (0, 1, 2, 3, 4)
def G(ks, p, lo=0, hi=8, nbs=ALLNB, taps=ALLT): return (ks, p, lo, hi, nbs, taps)
def NAT(nj): return [G(0, 0, 0, nj), G(0, 1, 0, nj), G(1, 0, 0, nj), G(1, 1, 0, nj)]
def PM(nj): return [G(ks, p, lo, hi) for p in range(2) for (lo, hi) in ((0, 4), (4, nj)) for ks in range(2)]
def REO2(nj): return [G(0, 0, 0, nj), G(1, 0, 0, 4), G(0, 1, 0, nj), G(1, 0, 4, nj), G(1, 1, 0, nj)]
T1 = tuple(range(int(os.environ.get("CT1", "2"))))
T2 = tuple(range(len(T1), 5))
COLD = [G(0, 0, nbs=(0, 1), taps=T1), G(0, 1, nbs=(0, 1), taps=T1), G(0, 0, nbs=(0, 1), taps=T2), G(0, 1, nbs=(0, 1), taps=T2),
        G(0, 0, nbs=(2, 3)), G(0, 1, nbs=(2, 3)), G(1, 0), G(1, 1)]
PM7 = [G(0, 0, 0, 4), G(1, 0, 0, 4), G(0, 0, 4, 8), G(1, 0, 4, 8), G(0, 1), G(1, 1)]
def BLOCKS(nj): return [(p, j) for p in range(2) for j in range(nj)]

def plan(groups, first=False, last=False, final=False, epi=None, b_dma_here=False, b_start=2, no_b2=False, cold=False, reserve=None, pf=False, nj=8):
    mf = []; xuse = {}; wuse = {}; accw = {}
    seen = set()
    raw = []
    S = 2 * nj
    nxd = 9 if nj == 8 else 8
    for g, (ks, p, lo, hi, gnb, gtaps) in enumerate(groups):
        for j in range(lo, hi):
            nbs = list(gnb) if j % 2 == 0 else list(gnb)[::-1]
            for ci, nb in enumerate(nbs):
                taps = list(gtaps) if ci % 2 == 0 else list(gtaps)[::-1]
                for i in taps:
                    zero = first and (p, j, nb) not in seen
                    seen.add((p, j, nb))
                    idx = len(raw)
                    raw.append((g, ks, p, j, nb, i, zero))
                    xuse.setdefault((g, j + i), []).append(idx)
                    wuse.setdefault((ks, i, nb), []).append(idx)
                    accw.setdefault((p, j, nb), []).append(idx)
    NMR = len(raw)
    slot = {}; sfree = {sl: 0 for sl in range(12)}
    frs = sorted(xuse.keys(), key=lambda t: min(xuse[t]))
    for (g, q) in frs:
        lu = max(xuse[(g, q)])
        if g == 0 and q < PRE: sl = q
        else:
            cand = list(range(12))
            if not final:
                if lu >= NMR - 44: cand = list(range(PRE, 12))
                elif lu >= NMR - 104: cand = list(range(PRE))
            sl = min(cand, key=lambda x: sfree[x])
        slot[(g, q)] = sl; sfree[sl] = lu + 1
    for (g, ks, p, j, nb, i, zero) in raw:
        acc = ACCS(p, j, nb)
        sub = 'A' if ks == 0 else 'B'
        mf.append(I("v_mfma_f32_16x16x32_bf16 %s, %s, %s, %s" % (acc, WREG(ks, i, nb), XREG(slot[(g, j + i)]), "0" if zero else acc),
                    needs=[('xr', g, j + i), ('wt', sub, i, nb, 0), ('wt', sub, i, nb, 1)]))
    NM = len(mf)
    gaps = [[] for _ in range(NM + 2)]
    used = [0] * (NM + 2); usedv = [0] * (NM + 2)
    for k_, c_ in (reserve or {}).items(): used[k_] += c_
    m0lock = set()
    def put(k, ins):
        c, v = cost(ins)
        gaps[k].append(ins); used[k] += c; usedv[k] += v
    def fits(k, c, v, cap=12, capv=8):
        return used[k] + c <= max(cap, c) and usedv[k] + v <= max(capv, v)
    def place(k, ins):
        tup = ins if isinstance(ins, tuple) else (ins,)
        tup = tuple(x if isinstance(x, I) else I(x) for x in tup)
        c = sum(cost(x)[0] for x in tup); v = sum(cost(x)[1] for x in tup)
        while not fits(k, c, v): k += 1
        for x in tup: put(k, x)
        return k
    def place_dma(k, pair):
        m, d = pair
        while not (k not in m0lock and k + 1 not in m0lock and fits(k, 4, 0) and fits(k + 1, 4, 4)): k += 1
        put(k, m); put(k + 1, d); m0lock.add(k); m0lock.add(k + 1)
        return k + 1
    slot_free = {}
    prev_k = 0
    for (g, q) in frs:
        sl = slot[(g, q)]
        if g == 0 and q < PRE:
            assert sl == q
        else:
            fu = min(xuse[(g, q)])
            k = place(max(slot_free.get(sl, 0), prev_k, fu - 60), xread(groups[g][0], groups[g][1], q, sl, ('xr', g, q), S))
            assert k < fu - 5, (g, q, k, fu)
            prev_k = k
        slot_free[sl] = max(xuse[(g, q)]) + 1
    if not final:
        bar_gap = max(prev_k + 8, slot_free[0])
        put(bar_gap, I("s_barrier", needs=[('xd', k) for k in range(nxd)] + [('xr',) + t for t in frs]))
        kk = bar_gap + 1
        for a_ in range(4):
            kk = place(kk, "v_xor_b32 v%d, 0x%x, v%d" % (V_XA + a_, SLOT_XOR, V_XA + a_))
        for q in range(PRE):
            kk = place(max(kk, slot_free[q]), xread(0, 0, q, q, ('xr', 'n', q)))
        assert kk <= NM - 3, kk
    def trs(sub, st, start, tr_end, sp_from=None, regions=WORDER, ready=None, check=False):
        n_ = 4 * len(regions)
        sp = max(1, min(TRSP, (tr_end - (sp_from or start)) // n_))
        k = start; done = {}
        for (hf, tap) in regions:
            for b in range(2):
                nb = 2 * hf + b
                for t in range(2):
                    e0 = max(wuse[(st, tap, nb)]) + 1 if sub == 'A2' else 0
                    if ready: e0 = max(e0, ready.get((hf, tap), 0))
                    k = place(max(k, e0), wtr(sub, st, tap, nb, t))
                    if sub != 'A2': assert k < min(wuse[(st, tap, nb)]) - 4, (sub, tap, nb, k, min(wuse[(st, tap, nb)]))
                    done[(hf, tap)] = k
                    k += sp
        assert k - sp < NM - 2
        return done
    def dmas(nsub, prev, done, start, end, maxsp, regions=WORDER):
        at = {}
        n_ = 2 * len(regions)
        dsp = max(2.0, min(float(maxsp), (end - start) / float(n_)))
        i = 0; kl = start - 2; base = start
        for (hf, tap) in regions:
            for dh in range(2):
                tgt = int(base + i * dsp)
                rdy = done.get((hf, tap), -6) + 6
                if rdy > tgt:
                    base = rdy; dsp = max(2.0, min(float(maxsp), (end - rdy) / float(n_ - i))); base -= i * dsp; tgt = rdy
                kl = place_dma(max(tgt, kl + 1), wdma(nsub, prev, tap, dh, hf))
                at[(hf, tap)] = kl
                i += 1
        place(kl + 1, WADV)
        return at
    st1_first = min(min(v) for (ks, i, nb), v in wuse.items() if ks == 1)
    st0_first_free = min(max(v) for (ks, i, nb), v in wuse.items() if ks == 0) + 1
    st0_end = max(max(v) for (ks, i, nb), v in wuse.items() if ks == 0) + 1
    if cold:
        CSP = int(os.environ.get("CSP", "6")); CLAT = int(os.environ.get("CLAT", "70"))
        hf1 = [r for r in WORDER if r[0] == 1]
        aA = dmas('A', None, {}, 1, 1 + 10 * CSP, CSP, hf1)
        r2 = [(0, t) for t in T2]
        fu2 = min(min(wuse[(0, t, nb)]) for t in T2 for nb in (0, 1))
        dA = trs('A', 0, max(2, fu2 - 40), fu2 - 8, regions=r2)
        fu3 = min(min(wuse[(0, t, nb)]) for t in range(5) for nb in (2, 3))
        dA.update(trs('A', 0, max(aA.values()) + 20, fu3 - 6, regions=hf1, ready={r: aA[r] + CLAT for r in hf1}))
        aB = dmas('B', 'A', dA, max(aA.values()) + CSP, 9999, CSP)
        d1 = trs('B', 1, min(aB.values()) + CLAT, st1_first - 6, regions=WORDER, ready={r: aB[r] + CLAT for r in WORDER})
        k = max(max(aB.values()) + 4, d1[WORDER[0]] + 6)
        aA2 = dmas('A2', 'B', d1, k, 470, WSPACE)
        d2 = trs('A2', 0, min(aA2.values()) + CLAT, NM - 40, regions=WORDER, ready={r: aA2[r] + CLAT for r in WORDER})
        dmas('B2', 'A2', d2, max(max(aA2.values()) + 4, d2[WORDER[0]] + 6), NM - 24, WSPACE)
    else:
        if b_dma_here:
            dmas('B', 'A', {}, 1, b_start - 40, WSPACE)
        d1 = trs('B', 1, b_start, st1_first - 6)
    if not final:
        if not cold:
            k = d1[WORDER[0]] + 6
            if last: place(k - 3, WRESET)
            dmas('A2', 'B', d1, k, st0_end - 80, WSPACE)
            d2 = trs('A2', 0, st0_first_free, NM - 12 if no_b2 else NM - 70, st0_end)
            if not no_b2:
                dmas('B2', 'A2', d2, d2[WORDER[0]] + 6, NM - 24, WSPACE)
        k = int(os.environ.get("CX0", "170")) if cold else 7
        if last:
            for s_ in xsrd_tile_ins(): k = place(k, s_)
            k += 2
        xsp = min(XSPACE, (bar_gap - XLAT - k) // nxd)
        for kx in range(nxd):
            k = place_dma(k, xdma(kx)); kl = k
            k += xsp
        k = kl + 1
        for s_ in XDMA_POST: k = place(k, s_)
    if pf and PF:
        if pf == 'disp':
            place(270, (I("s_cmp_lt_u32 s%d, 6" % S_DW), I("s_cbranch_scc1 L_disp"), I("PFSLOT", ('pf',), 'v')))
        else:
            place(270, I("global_load_dword v44, v47, s[88:89]", ('pf',), 'v'))
    if epi:
        base_gaps = [list(g) for g in gaps]; base_used = list(used); base_usedv = list(usedv)
        done = False
        for num in range(0, 33):
            gaps[:] = [list(g) for g in base_gaps]; used[:] = base_used; usedv[:] = base_usedv
            def extra(k):
                if num <= 16: return 4 if (k * num) % 16 < num else 0
                return 8 if (k * (num - 16)) % 16 < (num - 16) else 4
            k = 0; ok = True
            for (which, p, j) in epi:
                if which == 'own':
                    k = max(k, max(max(accw[(p, j, nb)]) for nb in range(4)) + 9)
                for slt in epi_block(p, j, EPI_TB):
                    for ins in slt:
                        c, v = cost(ins)
                        while k < NM and not (used[k] + c <= 12 + extra(k) and usedv[k] + v <= 8 + extra(k)): k += 1
                        if k >= NM - 3: ok = False; break
                        put(k, ins)
                        ar = acc_reads(ins.t)
                        if which == 'prev' and ar is not None:
                            for nb in range(4):
                                kind, b = ACC(p, j, nb)
                                if kind == ar[0] and b <= ar[1] < b + 4 and (p, j, nb) in accw and k > min(accw[(p, j, nb)]): ok = False
                    if not ok: break
                if not ok: break
            if ok:
                sys.stderr.write("epilogue fill: num=%d ends at gap %d\n" % (num, k)); done = True; break
        assert done
    pos_ = {}
    for k in range(NM + 1):
        for ins in gaps[k]:
            if ins.tag: pos_[ins.tag] = k
    md = min([k - pos_[n] for k in range(NM + 1) for ins in gaps[k] for n in ins.needs if n[0] == 'wd' and n in pos_] + [9999])
    assert md >= 50, md
    seq = []
    assert not gaps[NM + 1]
    for k in range(NM + 1):
        items = [x for x in gaps[k] if x.t.startswith("s_")] + [x for x in gaps[k] if not x.t.startswith("s_")]
        if k < NM: items.append(mf[k])
        tags_here = set(x.tag for x in items if x.tag)
        needs = []
        for x in items:
            for n_ in x.needs:
                assert n_ not in tags_here
                needs.append(n_)
        for idx, x in enumerate(items):
            y = I(x.t, x.tag, x.cls, needs if idx == 0 else [])
            y.gap = k; seq.append(y)
    return seq

def rename_exit(q):
    r = []
    for t in q:
        if t[0] == 'xr': r.append(('xr', 0, t[2]) if t[1] == 'n' else ('old',))
        elif t[0] in ('wt', 'wd') and t[1] in ('A2', 'B2'): r.append((t[0], t[1][0]) + t[2:])
        else: r.append(('old',))
    return r

def simulate(seq, entry, forced=None):
    vq, lq = list(entry[0]), list(entry[1])
    issued = set(entry[2])
    waits = {}; pos = {}
    for i, ins in enumerate(seq):
        vm = lg = None
        for n in ins.needs:
            assert n in issued, ("need not issued", n, ins.t)
            if n in vq:
                c = len(vq) - 1 - vq.index(n); vm = c if vm is None else min(vm, c)
            if n in lq:
                c = len(lq) - 1 - lq.index(n); lg = c if lg is None else min(lg, c)
        g_ = getattr(ins, 'gap', None)
        if g_ is not None:
            if vm is not None:
                old_ = [j for j, t in enumerate(vq) if pos.get(t, -999) <= g_ - VOLD]
                if old_: vm = min(vm, len(vq) - 1 - max(old_))
            if lg is not None:
                old_ = [j for j, t in enumerate(lq) if pos.get(t, -999) <= g_ - LOLD]
                if old_: lg = min(lg, len(lq) - 1 - max(old_))
        if forced and i in forced:
            fv, fl = forced[i]
            if fv is not None: vm = fv if vm is None else min(vm, fv)
            if fl is not None: lg = fl if lg is None else min(lg, fl)
        if vm is not None:
            assert vm <= 63
            if vm < len(vq): vq = vq[len(vq) - vm:] if vm else []
        if lg is not None:
            lg = min(lg, 15)
            if lg < len(lq): lq = lq[len(lq) - lg:] if lg else []
        if vm is not None or lg is not None: waits[i] = (vm, lg)
        if ins.cls == 'v': vq.append(ins.tag)
        if ins.cls == 'l': lq.append(ins.tag)
        if ins.tag:
            issued.add(ins.tag); pos[ins.tag] = getattr(ins, 'gap', -999)
    return waits, (rename_exit(vq), rename_exit(lq), frozenset(t for t in rename_exit(sorted(issued, key=str)) if t != ('old',)))

def merge(w1, w2):
    r = dict(w1)
    for i, (v, l) in w2.items():
        if i in r:
            a, b = r[i]
            v2 = a if v is None else (v if a is None else min(a, v))
            l2 = b if l is None else (l if b is None else min(b, l))
            r[i] = (v2, l2)
        else: r[i] = (v, l)
    return r

def emit(seq, waits, stamps_at=()):
    nm = 0
    for i, ins in enumerate(seq):
        if ins.t.startswith("v_mfma"):
            if nm in stamps_at: stamp()
            nm += 1
        if i in waits:
            v, l = waits[i]
            w = []
            if v is not None: w.append("vmcnt(%d)" % v)
            if l is not None: w.append("lgkmcnt(%d)" % l)
            e("s_waitcnt " + " ".join(w))
        if ins.t == "STAMP": stamp()
        elif ins.t == "PFSLOT":
            lab("L_pf")
            e("global_load_dword v44, v47, s[88:89]")
            lab("L_mid2")
        else: e(ins.t)
    return
def emit_old(seq, waits):
    for i, ins in enumerate(seq):
        if i in waits:
            v, l = waits[i]
            w = []
            if v is not None: w.append("vmcnt(%d)" % v)
            if l is not None: w.append("lgkmcnt(%d)" % l)
            e("s_waitcnt " + " ".join(w))
        e(ins.t)

NE7 = int(os.environ.get("NE7", "9"))
NE7F = int(os.environ.get("NE7F", "10"))
NE7G = int(os.environ.get("NE7G", "9"))
NBIG = int(os.environ.get("NBIG", "160"))

def out_switch():
    e("s_add_u32 s%d, s%d, s%d" % (S_OSRD, S_OPTR, S_NB))
    e("s_addc_u32 s%d, s%d, 0" % (S_OSRD + 1, S_OPTR + 1))
    e("s_add_u32 s%d, s%d, s%d" % (S_OBASE, S_NTB, S_OCOL))
    e("v_mad_i32_i24 v%d, v%d, s%d, v%d" % (V_OOFF, V_M, S_K, V_OOFF))
    e("s_movk_i32 s%d, 100" % S_DC)
    e("s_movk_i32 s%d, 100" % S_DW)
    e("s_mov_b32 s%d, 6" % S_CNT)

def tail(nj, ne):
    cm("exposed epilogue")
    e("s_nop 7")
    for (p, j) in BLOCKS(nj)[ne:]:
        for slt in epi_block(p, j, EPI_TB):
            for ins in slt: e(ins.t)
        e("s_nop 1")
    stamp()
    e("s_waitcnt vmcnt(0) lgkmcnt(0)")
    e("s_endpgm")

def main_kernel():
    K = NAME + "_kernel"
    out.append(".globl " + K); out.append(".p2align 8"); out.append(".type %s,@function" % K)
    lab(K)
    e("s_load_dwordx8 s[%d:%d], s[0:1], 0" % (S_XPTR, S_XPTR + 7))
    if STAMP: e("s_load_dwordx2 s[%d:%d], s[0:1], 32" % (S_WSP, S_WSP + 1))
    e("s_cmp_ge_u32 s2, 256")
    e("s_cbranch_scc1 L_done")
    e("s_and_b32 s%d, s2, 7" % S_T0)
    e("s_lshr_b32 s%d, s2, 3" % (S_T0 + 1))
    e("s_and_b32 s%d, s%d, 3" % (S_NT, S_T0 + 1))
    e("s_lshr_b32 s%d, s%d, 2" % (S_T0 + 1, S_T0 + 1))
    e("s_lshl_b32 s%d, s%d, 3" % (S_T0 + 1, S_T0 + 1))
    e("s_add_u32 s%d, s%d, s%d" % (S_T0, S_T0, S_T0 + 1))
    e("s_cmp_ge_u32 s%d, 32" % S_T0)
    e("s_cselect_b32 s%d, %d, 0" % (S_T0 + 5, BATCHB))
    e("s_and_b32 s%d, s%d, 31" % (S_T0, S_T0))
    e("s_lshl_b32 s%d, s%d, 18" % (S_TB, S_T0))
    e("s_sub_u32 s%d, s%d, 0x2000" % (S_T0 + 2, S_TB))
    e("s_getpc_b64 s[86:87]")
    lab("L_pc")
    e("s_add_u32 s88, s86, L_c7-L_pc")
    e("s_addc_u32 s89, s87, 0")
    e("s_add_u32 s90, s86, L_f16-L_pc")
    e("s_addc_u32 s91, s87, 0")
    e("s_add_u32 s92, s86, L_f14-L_pc")
    e("s_addc_u32 s93, s87, 0")
    e("s_add_u32 s86, s86, L_c0-L_pc")
    e("s_addc_u32 s87, s87, 0")
    e("v_lshlrev_b32 v47, 7, v0")
    e("v_lshrrev_b32 v45, 1, v47")
    e("v_min_u32 v45, L_c7-L_c0-4, v45")
    e("v_min_u32 v47, L_done-L_c7-4, v47")
    e("global_load_dword v44, v45, s[86:87]")
    e("v_lshrrev_b32 v%d, 6, v0" % V_T)
    e("v_and_b32 v%d, 63, v0" % (V_T + 1))
    L = V_T + 1
    e("v_lshrrev_b32 v%d, 2, v%d" % (V_WOFF, L))
    e("v_readfirstlane_b32 s3, v%d" % V_T)
    e("v_lshlrev_b32 v%d, 11, v%d" % (V_WOFF, V_WOFF))
    e("v_and_b32 v%d, 3, v%d" % (V_T + 2, L))
    e("v_lshl_add_u32 v%d, v%d, 4, v%d" % (V_WOFF, V_T + 2, V_WOFF))
    SG = V_T + 2; PI = V_T + 3; C = V_T + 4; MP = V_T + 5; F = V_T + 6; SG0 = V_T + 7
    e("v_lshrrev_b32 v%d, 3, v%d" % (SG0, L))
    e("v_and_b32 v%d, 7, v%d" % (PI, L))
    e("s_lshl_b32 s%d, s%d, 2" % (S_T0, S_NT))
    e("s_add_u32 s%d, s%d, s3" % (S_T0, S_T0))
    e("s_lshl_b32 s%d, s%d, 6" % (S_OCOL, S_T0))
    e("s_mul_i32 s%d, s3, 20480" % S_WL)
    e("s_add_u32 s%d, s%d, %d" % (S_WL, S_WL, WL1 - 20480))
    e("s_cmp_eq_u32 s3, 0")
    e("s_cselect_b32 s%d, %d, s%d" % (S_WL, WL0, S_WL))
    e("s_mov_b32 s%d, %d" % (S_WSRD + 2, WPB))
    e("s_mov_b32 s%d, 0x20000" % (S_WSRD + 3))
    e("s_mov_b32 s%d, 0x20000" % (S_XSRD + 3))
    for tap in range(5):
        for dh in range(2): e("s_mov_b32 s%d, %d" % (S_WC + tap * 2 + dh, tap * 1048576 + dh * 32768))
    e("s_lshl_b32 s%d, s3, 6" % (S_T0 + 3))
    e("s_lshl_b32 s%d, s3, 3" % (S_T0 + 4))
    e("s_add_u32 s%d, s%d, 256" % (S_T0 + 4, S_T0 + 4))
    e("s_lshl_b32 s%d, s3, 13" % S_M0)
    e("s_lshl_b32 s%d, s3, 10" % S_M0H)
    e("s_cmp_lt_u32 s3, 2")
    e("s_mov_b32 s%d, %d" % (S_T0, XSCRATCH - 2048))
    e("s_cselect_b32 s%d, 0x8000, s%d" % (S_T0, S_T0))
    e("s_cselect_b32 s%d, 0x%x, 0" % (S_HX, SLOT_XOR))
    e("s_cselect_b32 s%d, 0, 0x80000000" % S_HEXEC)
    e("s_add_u32 s%d, s%d, s%d" % (S_M0H, S_M0H, S_T0))
    e("s_mov_b32 s%d, %d" % (S_XSRD + 2, BATCHB))
    e("v_mov_b32 v%d, 0" % V_MP)
    e("v_mov_b32 v%d, 0" % (V_MP + 1))
    for k in range(9):
        if k < 8:
            e("v_add_u32 v%d, s%d, v%d" % (SG, S_T0 + 3, SG0))
            e("s_add_u32 s%d, s%d, 8" % (S_T0 + 3, S_T0 + 3))
        else:
            e("v_add_u32 v%d, s%d, v%d" % (SG, S_T0 + 4, SG0))
        e("v_mul_u32_u24 v%d, 241, v%d" % (C, SG))
        e("v_lshrrev_b32 v%d, 12, v%d" % (C, C))
        e("v_mul_u32_u24 v%d, 17, v%d" % (MP, C))
        e("v_sub_u32 v%d, v%d, v%d" % (MP, SG, MP))
        e("v_bfe_u32 v%d, v%d, 1, 3" % (F, MP))
        e("v_xor_b32 v%d, v%d, v%d" % (F, F, PI))
        e("v_lshl_add_u32 v%d, v%d, 4, v%d" % (C, MP, C))
        e("v_lshlrev_b32 v%d, 4, v%d" % (F, F))
        e("v_lshl_add_u32 v%d, v%d, 10, v%d" % (V_DCUR + k, C, F))
        e("v_add_u32 v%d, s%d, v%d" % (V_DCUR + k, S_T0 + 2, V_DCUR + k))
        e("v_lshl_or_b32 v%d, v%d, %d, v%d" % (V_MP + k // 6, MP, 5 * (k % 6), V_MP + k // 6))
    e("v_lshrrev_b32 v%d, 1, v%d" % (C, V_DCUR + 8))
    e("v_or_b32 v%d, s%d, v%d" % (C, S_HEXEC, C))
    e("s_cmp_lt_u32 s3, 2")
    e("s_cselect_b64 vcc, -1, 0")
    e("v_cndmask_b32 v%d, v%d, v%d, vcc" % (V_DCUR + 8, C, V_DCUR + 8))
    e("s_waitcnt lgkmcnt(0)")
    e("s_add_u32 s%d, s%d, s%d" % (S_XSRD, S_XPTR, S_T0 + 5))
    e("s_addc_u32 s%d, s%d, 0" % (S_XSRD + 1, S_XPTR + 1))
    e("s_add_u32 s%d, s%d, s%d" % (S_WSRD, S_XPTR + 2, S_OCOL))
    e("s_addc_u32 s%d, s%d, 0" % (S_WSRD + 1, S_XPTR + 3))
    e("s_mov_b64 s[%d:%d], s[%d:%d]" % (S_WB0, S_WB0 + 1, S_WSRD, S_WSRD + 1))
    e("s_mov_b32 s%d, s22" % S_DSRD)
    e("s_mov_b32 s%d, s23" % (S_DSRD + 1))
    e("s_mov_b32 s%d, s3" % S_WAVE)
    if STAMP:
        e("s_add_u32 s%d, s%d, 0x800000" % (S_SSRD, S_WSP))
        e("s_addc_u32 s%d, s%d, 0" % (S_SSRD + 1, S_WSP + 1))
        e("s_mov_b32 s%d, 0x40000" % (S_SSRD + 2))
        e("s_mov_b32 s%d, 0x20000" % (S_SSRD + 3))
        e("s_lshl_b32 s%d, s2, 9" % S_SOFF)
    stamp()
    pro = []
    def P(x):
        for y in (x if isinstance(x, tuple) else (x,)): pro.append(y if isinstance(y, I) else I(y))
    wd = [wdma('A2', None, tap, dh, hf) for (hf, tap) in WORDER for dh in range(2)]
    def PD(pair): P(pair[0]); P("s_nop 0"); P(pair[1])
    for k in range(9): PD(xdma(k))
    for k in range(10): PD(wd[k])
    for s_ in XDMA_POST: P(s_)
    KQ = V_T + 3; TMP = V_T + 4; TMP2 = V_T + 5; TMP3 = V_T + 6
    M = V_M
    P("v_and_b32 v%d, 15, v%d" % (M, L))
    P("v_lshrrev_b32 v%d, 4, v%d" % (KQ, L))
    P("v_lshrrev_b32 v%d, 1, v%d" % (TMP, KQ))
    P("v_lshlrev_b32 v%d, 11, v%d" % (TMP, TMP))
    P("v_and_b32 v%d, 1, v%d" % (TMP2, KQ))
    P("v_lshl_add_u32 v%d, v%d, 9, v%d" % (TMP, TMP2, TMP))
    P("v_lshl_add_u32 v%d, v%d, 4, v%d" % (TMP, M, TMP))
    P("v_add_u32 v%d, s%d, v%d" % (V_WTR, S_WL, TMP))
    P("v_lshlrev_b32 v%d, 14, v%d" % (V_OOFF, M))
    P("v_lshl_add_u32 v%d, v%d, 4, v%d" % (V_OOFF, KQ, V_OOFF))
    for s in range(2):
        for ks in range(2):
            dst = V_XA + s * 2 + ks
            P("v_add_u32 v%d, %d, v%d" % (TMP, s, M))
            P("v_bfe_u32 v%d, v%d, 1, 3" % (TMP2, TMP))
            P("v_add_u32 v%d, %d, v%d" % (TMP3, 4 * ks, KQ))
            P("v_xor_b32 v%d, v%d, v%d" % (TMP2, TMP2, TMP3))
            P("v_lshlrev_b32 v%d, 4, v%d" % (TMP2, TMP2))
            P("v_lshl_add_u32 v%d, v%d, 7, v%d" % (dst, TMP, TMP2))
    P("s_mov_b32 s%d, 0x4038aa3b" % S_C1)
    P("s_mov_b32 s%d, 0xbfb8aa3b" % S_C2)
    P("s_mov_b32 s%d, 0x41f00000" % S_C3)
    P("s_mov_b32 s%d, 0x20000" % (S_OSRD + 3))
    P("s_mov_b32 s%d, %d" % (S_OSRD + 2, BATCHB))
    P("s_movk_i32 s%d, 256" % (S_DSRD + 2))
    P("s_mov_b32 s%d, 0x20000" % (S_DSRD + 3))
    P("s_add_u32 s%d, s%d, s%d" % (S_OSRD, S_OPTR, S_T0 + 5))
    P("s_addc_u32 s%d, s%d, 0" % (S_OSRD + 1, S_OPTR + 1))
    P("s_add_u32 s%d, s%d, s%d" % (S_OBASE, S_TB, S_OCOL))
    P("s_mov_b32 s%d, 6" % S_DC)
    P("s_cmp_eq_u32 s%d, 0" % S_WAVE)
    P("s_cselect_b32 s%d, 6, 64" % S_DW)
    P("s_getreg_b32 s%d, hwreg(HW_REG_XCC_ID, 0, 3)" % S_XCC)
    P("s_mov_b32 s%d, 6" % S_CNT)
    P("v_mov_b32 v%d, %d" % (V_TMP, RANK_LDS))
    P(I("s_barrier", needs=[('xd', k) for k in range(9)]))
    for q in range(PRE): P(xread(0, 0, q, q, ('xr', 'n', q)))
    for tap in T1:
        for nb in range(2):
            for t in range(2): P(wtr('A2', 0, tap, nb, t))
    w, st_pro = simulate(pro, ([('old',)], [], frozenset()))
    emit(pro, w)
    stamp()
    B0P = int(os.environ.get('B0P', '40'))
    prev = [('prev',) + b for b in BLOCKS(8)[NE7:]]
    makers = {
        'c0': lambda r: plan(COLD, first=True, cold=True, reserve=r),
        'm16': lambda r: plan(NAT(8), reserve=r, pf='disp'),
        'c7': lambda r: plan(PM7, last=True, epi=[('own',) + b for b in BLOCKS(8)[:NE7]], reserve=r),
        'p16': lambda r: plan(REO2(8), first=True, b_start=B0P, epi=prev, reserve=r),
        'f16': lambda r: plan(PM(8), final=True, epi=[('own',) + b for b in BLOCKS(8)[:NE7F]], reserve=r),
        'p14': lambda r: plan(REO2(7), first=True, b_start=B0P, epi=prev, reserve=r, nj=7),
        'm14': lambda r: plan(NAT(7), reserve=r, pf=True, nj=7),
        'f14': lambda r: plan(PM(7), final=True, epi=[('own',) + b for b in BLOCKS(7)[:NE7G]], reserve=r, nj=7),
    }
    succ = {'c0': ['m16'], 'm16': ['m16', 'c7', 'f16'], 'c7': ['p16', 'p14'], 'p16': ['m16'], 'f16': [],
            'p14': ['m14'], 'm14': ['m14', 'f14'], 'f14': []}
    res = {n: {} for n in makers}
    for outer in range(8):
        sq = {n: makers[n](res[n]) for n in makers}
        ent = {n: [] for n in makers}; ent['c0'] = [st_pro]
        wt = {n: {} for n in makers}
        for it in range(12):
            changed = False
            for n in makers:
                nw = dict(wt[n])
                for en in ent[n]: nw = merge(nw, simulate(sq[n], en, wt[n])[0])
                if nw != wt[n]: wt[n] = nw; changed = True
                for en in ent[n]:
                    ex = simulate(sq[n], en, wt[n])[1]
                    for m_ in succ[n]:
                        if ex not in ent[m_]: ent[m_].append(ex); changed = True
            if not changed: break
        assert not changed
        ch2 = False; rep = []
        for n in makers:
            tot = {}
            for i, ins in enumerate(sq[n]):
                if not ins.t.startswith("v_mfma"): tot[ins.gap] = tot.get(ins.gap, 0) + cost(ins)[0]
                if i in wt[n]: tot[ins.gap] = tot.get(ins.gap, 0) + 4
            rep.append((n, sum(max(0, v - 12) for v in tot.values()), len(wt[n])))
            for i in wt[n]:
                g_ = sq[n][i].gap
                if tot[g_] > 12 and g_ not in res[n]:
                    res[n][g_] = 4; ch2 = True
        sys.stderr.write("outer %d %s\n" % (outer, rep))
        if not ch2: break
    lab("L_c0")
    cm("chunk 0 (tile 0)")
    emit(sq['c0'], wt['c0'])
    out.append(".p2align 6")
    lab("L_mid")
    emit(sq['m16'], wt['m16'])
    e("s_sub_u32 s%d, s%d, 1" % (S_DC, S_DC))
    e("s_sub_u32 s%d, s%d, 1" % (S_DW, S_DW))
    e("s_sub_u32 s%d, s%d, 1" % (S_CNT, S_CNT))
    e("s_cmp_lg_u32 s%d, 0" % S_CNT)
    e("s_cbranch_scc1 L_mid")
    stamp()
    e("s_cmp_lg_u32 s%d, 0" % S_DC)
    e("s_cbranch_scc1 L_f16")
    lab("L_c7")
    cm("decode the claimed second tile")
    r = S_T0
    e("ds_read_b32 v%d, v%d" % (V_RANK, V_TMP))
    e("s_waitcnt lgkmcnt(0)")
    e("v_readfirstlane_b32 s%d, v%d" % (r, V_RANK))
    e("s_nop 3")
    e("s_cmp_ge_u32 s%d, 40" % r)
    e("s_cselect_b32 s%d, 1, 0" % S_SMALL)
    e("s_cselect_b32 s%d, 40, 0" % (r + 1))
    e("s_cselect_b32 s%d, 12, 20" % (r + 2))
    e("s_cselect_b32 s%d, -2048, 0" % S_K)
    e("s_mov_b32 s%d, %d" % (r + 3, 256 * 1024))
    e("s_cselect_b32 s%d, %d, s%d" % (r + 3, 224 * 1024, r + 3))
    e("s_mov_b32 s%d, %d" % (r + 4, 8192 * 1024))
    e("s_cselect_b32 s%d, %d, s%d" % (r + 4, 13312 * 1024, r + 4))
    e("s_sub_u32 s%d, s%d, s%d" % (r, r, r + 1))
    e("s_cmp_ge_u32 s%d, s%d" % (r, r + 2))
    e("s_cselect_b32 s%d, %d, 0" % (S_NB, BATCHB))
    e("s_cselect_b32 s%d, s%d, 0" % (r + 2, r + 2))
    e("s_sub_u32 s%d, s%d, s%d" % (r, r, r + 2))
    e("s_mul_i32 s%d, s%d, s%d" % (r, r, r + 3))
    e("s_add_u32 s%d, s%d, s%d" % (S_NTB, r, r + 4))
    e("s_sub_u32 s%d, s%d, s%d" % (S_DELTA, S_NTB, S_TB))
    cm("chunk 7 (tile 0)")
    emit(sq['c7'], wt['c7'])
    stamp()
    e("v_min_u32 v47, L_done-L_f14-4, v47")
    e("s_cmp_lg_u32 s%d, 0" % S_SMALL)
    e("s_cbranch_scc1 L_p14")
    cm("chunk 0 (tile 1, 256 rows)")
    emit(sq['p16'], wt['p16'])
    out_switch()
    e("s_mov_b64 s[88:89], s[90:91]")
    stamp()
    e("s_branch L_mid")
    lab("L_disp")
    cm("wave 0 only: time one chunk, publish per-XCC time, claim the second tile from the matching end of this n-tile's list")
    t = S_T0
    e("s_cmp_eq_u32 s%d, 5" % S_DW)
    e("s_cbranch_scc0 L_d4")
    e("s_memrealtime s[94:95]")
    e("s_branch L_pf")
    lab("L_d4")
    e("s_cmp_eq_u32 s%d, 4" % S_DW)
    e("s_cbranch_scc0 L_d3")
    e("s_cmp_lg_u32 s%d, 0" % S_NT)
    e("s_cbranch_scc1 L_pf")
    e("s_memrealtime s[96:97]")
    e("s_lshl_b32 s%d, s%d, 2" % (t + 1, S_XCC))
    e("s_waitcnt lgkmcnt(0)")
    e("s_sub_u32 s%d, s96, s94" % t)
    e("s_min_u32 s%d, s%d, 4095" % (t, t))
    e("s_add_u32 s%d, s%d, 0x100000" % (t, t))
    e("v_mov_b32 v%d, s%d" % (V_RANK, t))
    e("s_mov_b64 exec, 1")
    e("buffer_atomic_add v%d, off, s[%d:%d], s%d offset:32" % (V_RANK, S_DSRD, S_DSRD + 3, t + 1))
    e("s_mov_b64 exec, -1")
    e("s_branch L_mid2")
    lab("L_d3")
    e("s_cmp_eq_u32 s%d, 3" % S_DW)
    e("s_cbranch_scc0 L_d2")
    e("v_lshlrev_b32 v%d, 2, v%d" % (V_T, V_M))
    e("s_mov_b64 exec, 0xff")
    e("buffer_load_dword v%d, v%d, s[%d:%d], 0 offen offset:32 sc0 sc1" % (V_RANK, V_T, S_DSRD, S_DSRD + 3))
    e("s_mov_b64 exec, -1")
    e("s_branch L_mid2")
    lab("L_d2")
    e("s_cmp_eq_u32 s%d, 2" % S_DW)
    e("s_cbranch_scc0 L_d1")
    e("s_waitcnt vmcnt(40)")
    e("v_readlane_b32 s%d, v%d, s%d" % (t, V_RANK, S_XCC))
    e("v_lshrrev_b32 v%d, 20, v%d" % (V_T, V_RANK))
    e("v_and_b32 v%d, 0xfffff, v%d" % (V_T + 1, V_RANK))
    e("s_lshr_b32 s%d, s%d, 20" % (t + 1, t))
    e("s_and_b32 s%d, s%d, 0xfffff" % (t, t))
    e("v_mul_u32_u24 v%d, s%d, v%d" % (V_T + 1, t + 1, V_T + 1))
    e("v_mul_u32_u24 v%d, s%d, v%d" % (V_T, t, V_T))
    e("s_mov_b64 exec, 0xff")
    e("v_cmp_gt_u32 vcc, v%d, v%d" % (V_T + 1, V_T))
    e("s_mov_b64 exec, 1")
    e("v_mov_b32 v%d, 1" % V_RANK)
    e("s_lshl_b32 s%d, s%d, 6" % (t + 1, S_NT))
    e("s_nop 2")
    e("s_bcnt1_i32_b64 s%d, vcc" % t)
    e("s_cmp_lt_u32 s%d, %d" % (t, NSLOW))
    e("s_cselect_b32 s%d, 4, 0" % S_PREF)
    e("s_add_u32 s%d, s%d, s%d" % (t + 1, t + 1, S_PREF))
    e("buffer_atomic_add v%d, off, s[%d:%d], s%d sc0" % (V_RANK, S_DSRD, S_DSRD + 3, t + 1))
    e("s_mov_b64 exec, -1")
    e("s_branch L_mid2")
    lab("L_d1")
    e("s_waitcnt vmcnt(40)")
    e("v_readfirstlane_b32 s%d, v%d" % (t, V_RANK))
    e("s_nop 3")
    e("s_sub_u32 s%d, 63, s%d" % (t + 1, t))
    e("s_cmp_eq_u32 s%d, 0" % S_PREF)
    e("s_cselect_b32 s%d, s%d, s%d" % (t, t, t + 1))
    e("v_mov_b32 v%d, s%d" % (V_RANK, t))
    e("ds_write_b32 v%d, v%d" % (V_TMP, V_RANK))
    e("s_branch L_pf")
    lab("L_p14")
    cm("chunk 0 (tile 1, 224 rows)")
    emit(sq['p14'], wt['p14'])
    out_switch()
    e("s_mov_b64 s[88:89], s[92:93]")
    stamp()
    out.append(".p2align 6")
    lab("L_mid14")
    emit(sq['m14'], wt['m14'])
    e("s_sub_u32 s%d, s%d, 1" % (S_CNT, S_CNT))
    e("s_cmp_lg_u32 s%d, 0" % S_CNT)
    e("s_cbranch_scc1 L_mid14")
    stamp()
    e("s_branch L_f14")
    lab("L_f16")
    cm("chunk 7 (tile 1, 256 rows)")
    emit(sq['f16'], wt['f16'])
    stamp()
    tail(8, NE7F)
    lab("L_f14")
    cm("chunk 7 (tile 1, 224 rows)")
    emit(sq['f14'], wt['f14'])
    stamp()
    tail(7, NE7G)
    lab("L_done")
    e("s_endpgm")

hdr = open("cdna_kernels/%s.s.ref" % NAME).read().split("\n")
for l in hdr:
    if l.startswith(";") and "@launch" not in l and "Override" not in l and "grid=ceil" not in l:
        out.append(l)
out.append("; @launch grid=(256,1,1) block=(256,1,1) lds=%d" % LDS_BYTES)
out.append('.amdgcn_target "amdgcn-amd-amdhsa--gfx950"')
out.append(".text")
main_kernel()
out.append('.section .rodata,"a"')
out.append(".p2align 6")
out.append(".amdhsa_kernel %s_kernel" % NAME)
out += ["  .amdhsa_next_free_vgpr 512", "  .amdhsa_next_free_sgpr 100", "  .amdhsa_accum_offset 256",
        "  .amdhsa_group_segment_fixed_size 0", "  .amdhsa_kernarg_size 40", "  .amdhsa_user_sgpr_count 2",
        "  .amdhsa_user_sgpr_kernarg_segment_ptr 1", "  .amdhsa_system_sgpr_workgroup_id_x 1", ".end_amdhsa_kernel"]
dst = sys.argv[1] if len(sys.argv) > 1 else "cdna_kernels/%s.s" % NAME
open(dst, "w").write("\n".join(out) + "\n")
print("wrote", dst, len(out), "lines")
```

```python
import sys, os, re, copy

NAME = "standalone__autoregressive_conv_wavernn__speech"
T = 16000
BATCHB = T * 1024
WPB = 5 * 512 * 1024 * 2
SLOT_XOR = 0x10000
CLS = 17 * 128
WL0 = 34816
WL1 = 0x10000 + 34816
LDS_BYTES = WL1 + 3 * 20480
STAMP = os.environ.get("STAMP") is not None
MAPPING = int(os.environ.get("MAPPING", "0"))
CAP = int(os.environ.get("CAP", "8"))
WSPACE = int(os.environ.get("WSPACE", "13"))
XSPACE = int(os.environ.get("XSPACE", "36"))
XLAT = int(os.environ.get("XLAT", "150"))
TRSP = int(os.environ.get("TRSP", "3"))
VOLD = int(os.environ.get("VOLD", "120"))
LOLD = int(os.environ.get("LOLD", "12"))
PF = os.environ.get("NOPF") is None
XNT = "" if os.environ.get("NOXNT") else " nt"

out = []
def e(s): out.append(" " + s)
def lab(s): out.append(s + ":")
def cm(s): out.append("    ; " + s)

def WREGN(st, tap, nb): return st * 80 + (tap * 4 + nb) * 4
def WREG(st, tap, nb):
    b = WREGN(st, tap, nb); return "a[%d:%d]" % (b, b + 3)
def XREG(q):
    b = 160 + q * 4; return "a[%d:%d]" % (b, b + 3)
NVACC = 52
def ACC(p, j, nb):
    idx = (p * 8 + j) * 4 + nb
    if idx < NVACC: return ('v', 48 + idx * 4)
    return ('a', 208 + (idx - NVACC) * 4)
def ACCS(p, j, nb):
    k, b = ACC(p, j, nb); return "%s[%d:%d]" % (k, b, b + 3)

V_XA = 1; V_WOFF = 5; V_OOFF = 6; V_DCUR = 7
V_T = 16
V_WTR = 46
S_XSRD = 4; S_WSRD = 8; S_OSRD = 12
S_XPTR = 16; S_OPTR = 20
S_WAVE = 22; S_NT = 24; S_DC = 25
S_DSRD = 64; S_NB = 68; S_NTB = 69; S_NOCOL = 70; S_K = 71; S_SMALL = 72; S_DELTA = 73
S_TRY = 70; S_DW = 23; S_PREF = 74; S_XCC = 75

V_MP = 36; V_TMP = 38; V_M = 39; V_RANK = 45
RANK_LDS = 57344
S_M0 = 26; S_M0H = 27; S_WS = 28; S_WL = 29; S_CNT = 30
S_HEXEC = 32
S_T0 = 34
S_OBASE = 40; S_TILE = 41; S_C1 = 42; S_C2 = 43; S_TB = 44; S_OCOL = 45; S_ST = 46
S_SSRD = 48; S_SOFF = 52; S_WSP = 60
S_C3 = 47; S_HX = 31; S_WB0 = 62; S_WC = 76
XSCRATCH = 55296

_stn = [0]
NOSTAMP = [False]
def stamp():
    if not STAMP or NOSTAMP[0]: return
    _stn[0] += 1
    e("s_memtime s[56:57]"); e("s_memrealtime s[58:59]"); e("s_waitcnt lgkmcnt(0)")
    e("s_cmp_lg_u32 s%d, 0" % S_WAVE)
    e("s_cbranch_scc1 L_st%d" % _stn[0])
    for k in range(4): e("v_mov_b32 v%d, s%d" % (40 + k, 56 + k))
    e("s_mov_b64 exec, 1")
    e("buffer_store_dwordx4 v[40:43], off, s[%d:%d], s%d" % (S_SSRD, S_SSRD + 3, S_SOFF))
    e("s_mov_b64 exec, -1"); e("s_nop 1")
    lab("L_st%d" % _stn[0])
    e("s_add_u32 s%d, s%d, 16" % (S_SOFF, S_SOFF))

PRE = 6

class I:
    def __init__(self, t, tag=None, cls=None, needs=()):
        self.t = t; self.tag = tag; self.cls = cls; self.needs = list(needs)

MEMC = 4
def cost(ins):
    op = ins.t.split()[0]
    if op in ("v_exp_f32", "v_rcp_f32"): return (8, 8)
    if op.startswith("s_"): return (4, 0)
    return (4, 4)

def xread(ks, p, q, sl, tag, S=16):
    r = p + 2 * q
    s = 1 if r >= S else 0
    c = r - S * s
    return I("ds_read_b128 %s, v%d offset:%d" % (XREG(sl), V_XA + s * 2 + ks, c * CLS), tag, 'l')

def xsrd_tile_ins():
    ins = []
    ins.append(("s_add_u32 s%d, s%d, s%d" % (S_XSRD, S_XPTR, S_NB), "s_addc_u32 s%d, s%d, 0" % (S_XSRD + 1, S_XPTR + 1)))
    for k in range(9):
        ins.append(("v_bfe_u32 v%d, v%d, %d, 5" % (V_TMP, V_MP + k // 6, 5 * (k % 6)),
                    "v_mad_i32_i24 v%d, v%d, s%d, v%d" % (V_DCUR + k, V_TMP, S_K, V_DCUR + k)))
        ins.append(("v_add_u32 v%d, s%d, v%d" % (V_DCUR + k, S_DELTA, V_DCUR + k),))
    return ins

def xdma(k):
    ld = "buffer_load_dwordx4 v%d, s[%d:%d], 0 offen%s lds" % (V_DCUR + k, S_XSRD, S_XSRD + 3, XNT)
    m = ("s_add_u32 m0, s%d, %d" % (S_M0, k * 1024)) if k < 8 else ("s_mov_b32 m0, s%d" % S_M0H)
    return (I(m), I(ld, ('xd', k), 'v'))
XDMA_POST = [("s_add_u32 s%d, s%d, 128" % (S_XSRD, S_XSRD), "s_addc_u32 s%d, s%d, 0" % (S_XSRD + 1, S_XSRD + 1)),
             ("s_xor_b32 s%d, s%d, 0x%x" % (S_M0, S_M0, SLOT_XOR),),
             ("s_xor_b32 s%d, s%d, s%d" % (S_M0H, S_M0H, S_HX),)]

def wdma(sub, prev, tap, dh, hf):
    needs = [('wt', prev, tap, 2 * hf + b, t) for b in range(2) for t in range(2)] if prev else []
    return (I("s_add_u32 m0, s%d, %d" % (S_WL, tap * 4096 + dh * 2048)),
            I("buffer_load_dwordx4 v%d, s[%d:%d], s%d offen offset:%d lds" % (V_WOFF, S_WSRD, S_WSRD + 3, S_WC + tap * 2 + dh, hf * 1024),
              ('wd', sub, tap, dh, hf), 'v', needs))
def wtr(sub, st, tap, nb, t):
    b = WREGN(st, tap, nb) + 2 * t
    hf = nb >> 1
    return I("ds_read_b64_tr_b16 a[%d:%d], v%d offset:%d" % (b, b + 1, V_WTR, tap * 4096 + hf * 1024 + t * 256 + (nb & 1) * 8),
             ('wt', sub, tap, nb, t), 'l', [('wd', sub, tap, dh, hf) for dh in range(2)])
WADV = ("s_add_u32 s%d, s%d, 0x10000" % (S_WSRD, S_WSRD), "s_addc_u32 s%d, s%d, 0" % (S_WSRD + 1, S_WSRD + 1))
WRESET = ("s_mov_b32 s%d, s%d" % (S_WSRD, S_WB0), "s_mov_b32 s%d, s%d" % (S_WSRD + 1, S_WB0 + 1))

def epi_block(p, j, tb):
    sl = []
    regs = {}
    for nb in range(4):
        k, b = ACC(p, j, nb)
        for r in range(4): regs[(nb, r)] = (k, b + r)
    PK = tb
    for h in range(2):
        E = [tb + 4 + k for k in range(4)]
        G = [tb + 8 + k for k in range(4)]
        Dn = [tb + 12 + k for k in range(4)]
        src = {}; rd = []
        for k in range(4):
            kind, r = regs[(h, k)]
            if kind == 'a':
                rd.append("v_accvgpr_read_b32 v%d, a%d" % (E[k], r)); r = E[k]
            src[('e', k)] = r
            kind, r = regs[(2 + h, k)]
            if kind == 'a':
                rd.append("v_accvgpr_read_b32 v%d, a%d" % (G[k], r)); r = G[k]
            src[('g', k)] = r
        for i in range(0, len(rd), 2): sl.append(tuple(rd[i:i + 2]))
        mulE = ["v_mul_f32 v%d, s%d, v%d" % (E[k], S_C1, src[('e', k)]) for k in range(4)]
        mulG = ["v_mul_f32 v%d, s%d, v%d" % (G[k], S_C2, src[('g', k)]) for k in range(4)]
        mn = ["v_min_f32 v%d, s%d, v%d" % (E[k], S_C3, E[k]) for k in range(4)]
        eG = ["v_exp_f32 v%d, v%d" % (G[k], G[k]) for k in range(4)]
        eE = ["v_exp_f32 v%d, v%d" % (E[k], E[k]) for k in range(4)]
        aD = ["v_add_f32 v%d, 1.0, v%d" % (Dn[k], E[k]) for k in range(4)]
        den = ["v_fmac_f32 v%d, v%d, v%d" % (Dn[k], Dn[k], G[k]) for k in range(4)]
        rc = ["v_rcp_f32 v%d, v%d" % (Dn[k], Dn[k]) for k in range(4)]
        fin = ["v_fma_f32 v%d, v%d, v%d, -v%d" % (E[k], E[k], Dn[k], Dn[k]) for k in range(4)]
        cv = ["v_cvt_pk_bf16_f32 v%d, v%d, v%d" % (PK + 2 * h + k, E[2 * k], E[2 * k + 1]) for k in range(2)]
        sl += [(mulE[0], mulE[1]), (mulE[2], mulE[3]), (mn[0], mn[1]), (mn[2], mn[3]), (eE[0],), (mulG[0], mulG[1]), (eE[1],),
               (mulG[2], mulG[3]), (eE[2],), (eE[3],), (eG[0],), (aD[0], aD[1]), (eG[1],), (aD[2], aD[3]),
               (eG[2],), (eG[3],), (den[0], den[1]), (den[2], den[3]), (rc[0],), (rc[1],), (rc[2],), (rc[3],),
               (fin[0], fin[1]), (fin[2], fin[3]), (cv[0], cv[1])]
    res = [[I(x) for x in s] for s in sl]
    res.append([I("s_add_u32 s%d, s%d, %d" % (S_ST, S_OBASE, (p + 2 * j) * 1024)),
                I("buffer_store_dwordx4 v[%d:%d], v%d, s[%d:%d], s%d offen" % (PK, PK + 3, V_OOFF, S_OSRD, S_OSRD + 3, S_ST), ('st', p, j), 'v')])
    return res
EPI_TB = V_T

def acc_reads(t):
    m = re.match(r"v_accvgpr_read_b32 v\d+, a(\d+)", t)
    if m: return ('a', int(m.group(1)))
    m = re.match(r"v_mul_f32 v\d+, s\d+, v(\d+)", t)
    if m and int(m.group(1)) >= 48: return ('v', int(m.group(1)))
    return None

WORDER = [(hf, tap) for hf in range(2) for tap in range(5)]

ALLNB = (0, 1, 2, 3); ALLT = (0, 1, 2, 3, 4)
def G(ks, p, lo=0, hi=8, nbs=ALLNB, taps=ALLT): return (ks, p, lo, hi, nbs, taps)
def NJ(S): return ((S + 1) // 2, S // 2)
def NAT(S): return [G(ks, p, 0, NJ(S)[p]) for ks in range(2) for p in range(2)]
def PM(S): return [G(ks, p, lo, hi) for p in range(2) for (lo, hi) in ((0, 4), (4, NJ(S)[p])) for ks in range(2)]
def REO2(S): return [G(0, 0, 0, NJ(S)[0]), G(1, 0, 0, 4), G(0, 1, 0, NJ(S)[1]), G(1, 0, 4, NJ(S)[0]), G(1, 1, 0, NJ(S)[1])]
PATTERN = [int(c) for c in os.environ.get("PAT", "14,15,15,15,15,16,16,16").split(",")]
assert sum(PATTERN) * 64 == 7808 and len(PATTERN) == 8 and sorted(PATTERN) == PATTERN
SMALL = sorted(set(PATTERN) - {16}, reverse=True)
T1 = tuple(range(int(os.environ.get("CT1", "2"))))
T2 = tuple(range(len(T1), 5))
COLD = [G(0, 0, nbs=(0, 1), taps=T1), G(0, 1, nbs=(0, 1), taps=T1), G(0, 0, nbs=(0, 1), taps=T2), G(0, 1, nbs=(0, 1), taps=T2),
        G(0, 0, nbs=(2, 3)), G(0, 1, nbs=(2, 3)), G(1, 0), G(1, 1)]
PM7 = [G(0, 0, 0, 4), G(1, 0, 0, 4), G(0, 0, 4, 8), G(1, 0, 4, 8), G(0, 1), G(1, 1)]
def BLOCKS(S): return [(p, j) for p in range(2) for j in range(NJ(S)[p])]

def plan(groups, first=False, last=False, final=False, epi=None, b_dma_here=False, b_start=2, no_b2=False, cold=False, reserve=None, pf=False, S=16):
    mf = []; xuse = {}; wuse = {}; accw = {}
    seen = set()
    raw = []
    nxd = 9 if S == 16 else 8
    for g, (ks, p, lo, hi, gnb, gtaps) in enumerate(groups):
        for j in range(lo, hi):
            nbs = list(gnb) if j % 2 == 0 else list(gnb)[::-1]
            for ci, nb in enumerate(nbs):
                taps = list(gtaps) if ci % 2 == 0 else list(gtaps)[::-1]
                for i in taps:
                    zero = first and (p, j, nb) not in seen
                    seen.add((p, j, nb))
                    idx = len(raw)
                    raw.append((g, ks, p, j, nb, i, zero))
                    xuse.setdefault((g, j + i), []).append(idx)
                    wuse.setdefault((ks, i, nb), []).append(idx)
                    accw.setdefault((p, j, nb), []).append(idx)
    NMR = len(raw)
    slot = {}; sfree = {sl: 0 for sl in range(12)}
    frs = sorted(xuse.keys(), key=lambda t: min(xuse[t]))
    for (g, q) in frs:
        lu = max(xuse[(g, q)])
        if g == 0 and q < PRE: sl = q
        else:
            cand = list(range(12))
            if not final:
                if lu >= NMR - 44: cand = list(range(PRE, 12))
                elif lu >= NMR - 104: cand = list(range(PRE))
            sl = min(cand, key=lambda x: sfree[x])
        slot[(g, q)] = sl; sfree[sl] = lu + 1
    for (g, ks, p, j, nb, i, zero) in raw:
        acc = ACCS(p, j, nb)
        sub = 'A' if ks == 0 else 'B'
        mf.append(I("v_mfma_f32_16x16x32_bf16 %s, %s, %s, %s" % (acc, WREG(ks, i, nb), XREG(slot[(g, j + i)]), "0" if zero else acc),
                    needs=[('xr', g, j + i), ('wt', sub, i, nb, 0), ('wt', sub, i, nb, 1)]))
    NM = len(mf)
    gaps = [[] for _ in range(NM + 2)]
    used = [0] * (NM + 2); usedv = [0] * (NM + 2)
    for k_, c_ in (reserve or {}).items(): used[k_] += c_
    m0lock = set()
    def put(k, ins):
        c, v = cost(ins)
        gaps[k].append(ins); used[k] += c; usedv[k] += v
    def fits(k, c, v, cap=12, capv=8):
        return used[k] + c <= max(cap, c) and usedv[k] + v <= max(capv, v)
    def place(k, ins):
        tup = ins if isinstance(ins, tuple) else (ins,)
        tup = tuple(x if isinstance(x, I) else I(x) for x in tup)
        c = sum(cost(x)[0] for x in tup); v = sum(cost(x)[1] for x in tup)
        while not fits(k, c, v): k += 1
        for x in tup: put(k, x)
        return k
    def place_dma(k, pair):
        m, d = pair
        while not (k not in m0lock and k + 1 not in m0lock and fits(k, 4, 0) and fits(k + 1, 4, 4)): k += 1
        put(k, m); put(k + 1, d); m0lock.add(k); m0lock.add(k + 1)
        return k + 1
    slot_free = {}
    prev_k = 0
    for (g, q) in frs:
        sl = slot[(g, q)]
        if g == 0 and q < PRE:
            assert sl == q
        else:
            fu = min(xuse[(g, q)])
            k = place(max(slot_free.get(sl, 0), prev_k, fu - 60), xread(groups[g][0], groups[g][1], q, sl, ('xr', g, q), S))
            assert k < fu - 5, (g, q, k, fu)
            prev_k = k
        slot_free[sl] = max(xuse[(g, q)]) + 1
    if not final:
        bar_gap = max(prev_k + 8, slot_free[0])
        put(bar_gap, I("s_barrier", needs=[('xd', k) for k in range(nxd)] + [('xr',) + t for t in frs]))
        kk = bar_gap + 1
        for a_ in range(4):
            kk = place(kk, "v_xor_b32 v%d, 0x%x, v%d" % (V_XA + a_, SLOT_XOR, V_XA + a_))
        for q in range(PRE):
            kk = place(max(kk, slot_free[q]), xread(0, 0, q, q, ('xr', 'n', q)))
        assert kk <= NM - 3, kk
    def trs(sub, st, start, tr_end, sp_from=None, regions=WORDER, ready=None, check=False):
        n_ = 4 * len(regions)
        sp = max(1, min(TRSP, (tr_end - (sp_from or start)) // n_))
        k = start; done = {}
        for (hf, tap) in regions:
            for b in range(2):
                nb = 2 * hf + b
                for t in range(2):
                    e0 = max(wuse[(st, tap, nb)]) + 1 if sub == 'A2' else 0
                    if ready: e0 = max(e0, ready.get((hf, tap), 0))
                    k = place(max(k, e0), wtr(sub, st, tap, nb, t))
                    if sub != 'A2': assert k < min(wuse[(st, tap, nb)]) - 4, (sub, tap, nb, k, min(wuse[(st, tap, nb)]))
                    done[(hf, tap)] = k
                    k += sp
        assert k - sp < NM - 2
        return done
    def dmas(nsub, prev, done, start, end, maxsp, regions=WORDER):
        at = {}
        n_ = 2 * len(regions)
        dsp = max(2.0, min(float(maxsp), (end - start) / float(n_)))
        i = 0; kl = start - 2; base = start
        for (hf, tap) in regions:
            for dh in range(2):
                tgt = int(base + i * dsp)
                rdy = done.get((hf, tap), -6) + 6
                if rdy > tgt:
                    base = rdy; dsp = max(2.0, min(float(maxsp), (end - rdy) / float(n_ - i))); base -= i * dsp; tgt = rdy
                kl = place_dma(max(tgt, kl + 1), wdma(nsub, prev, tap, dh, hf))
                at[(hf, tap)] = kl
                i += 1
        place(kl + 1, WADV)
        return at
    st1_first = min(min(v) for (ks, i, nb), v in wuse.items() if ks == 1)
    st0_first_free = min(max(v) for (ks, i, nb), v in wuse.items() if ks == 0) + 1
    st0_end = max(max(v) for (ks, i, nb), v in wuse.items() if ks == 0) + 1
    if cold:
        CSP = int(os.environ.get("CSP", "6")); CLAT = int(os.environ.get("CLAT", "70"))
        hf1 = [r for r in WORDER if r[0] == 1]
        aA = dmas('A', None, {}, 1, 1 + 10 * CSP, CSP, hf1)
        r2 = [(0, t) for t in T2]
        fu2 = min(min(wuse[(0, t, nb)]) for t in T2 for nb in (0, 1))
        dA = trs('A', 0, max(2, fu2 - 40), fu2 - 8, regions=r2)
        fu3 = min(min(wuse[(0, t, nb)]) for t in range(5) for nb in (2, 3))
        dA.update(trs('A', 0, max(aA.values()) + 20, fu3 - 6, regions=hf1, ready={r: aA[r] + CLAT for r in hf1}))
        aB = dmas('B', 'A', dA, max(aA.values()) + CSP, 9999, CSP)
        d1 = trs('B', 1, min(aB.values()) + CLAT, st1_first - 6, regions=WORDER, ready={r: aB[r] + CLAT for r in WORDER})
        k = max(max(aB.values()) + 4, d1[WORDER[0]] + 6)
        aA2 = dmas('A2', 'B', d1, k, 470, WSPACE)
        d2 = trs('A2', 0, min(aA2.values()) + CLAT, NM - 40, regions=WORDER, ready={r: aA2[r] + CLAT for r in WORDER})
        dmas('B2', 'A2', d2, max(max(aA2.values()) + 4, d2[WORDER[0]] + 6), NM - 24, WSPACE)
    else:
        if b_dma_here:
            dmas('B', 'A', {}, 1, b_start - 40, WSPACE)
        d1 = trs('B', 1, b_start, st1_first - 6)
    if not final:
        if not cold:
            k = d1[WORDER[0]] + 6
            if last: place(k - 3, WRESET)
            dmas('A2', 'B', d1, k, st0_end - 80, WSPACE)
            d2 = trs('A2', 0, st0_first_free, NM - 12 if no_b2 else NM - 70, st0_end)
            if not no_b2:
                dmas('B2', 'A2', d2, d2[WORDER[0]] + 6, NM - 24, WSPACE)
        k = int(os.environ.get("CX0", "170")) if cold else 7
        if last:
            for s_ in xsrd_tile_ins(): k = place(k, s_)
            k += 2
        xsp = min(XSPACE, (bar_gap - XLAT - k) // nxd)
        for kx in range(nxd):
            k = place_dma(k, xdma(kx)); kl = k
            k += xsp
        k = kl + 1
        for s_ in XDMA_POST: k = place(k, s_)
    if pf and PF:
        if pf == 'disp':
            place(270, (I("s_cmp_lt_u32 s%d, 6" % S_DW), I("s_cbranch_scc1 L_disp"), I("PFSLOT", ('pf',), 'v')))
        else:
            place(270, I("global_load_dword v44, v47, s[88:89]", ('pf',), 'v'))
    if epi:
        base_gaps = [list(g) for g in gaps]; base_used = list(used); base_usedv = list(usedv)
        done = False
        for num in range(0, 33):
            gaps[:] = [list(g) for g in base_gaps]; used[:] = base_used; usedv[:] = base_usedv
            def extra(k):
                if num <= 16: return 4 if (k * num) % 16 < num else 0
                return 8 if (k * (num - 16)) % 16 < (num - 16) else 4
            k = 0; ok = True
            for (which, p, j) in epi:
                if which == 'own':
                    k = max(k, max(max(accw[(p, j, nb)]) for nb in range(4)) + 9)
                for slt in epi_block(p, j, EPI_TB):
                    for ins in slt:
                        c, v = cost(ins)
                        while k < NM and not (used[k] + c <= 12 + extra(k) and usedv[k] + v <= 8 + extra(k)): k += 1
                        if k >= NM - 3: ok = False; break
                        put(k, ins)
                        ar = acc_reads(ins.t)
                        if which == 'prev' and ar is not None:
                            for nb in range(4):
                                kind, b = ACC(p, j, nb)
                                if kind == ar[0] and b <= ar[1] < b + 4 and (p, j, nb) in accw and k > min(accw[(p, j, nb)]): ok = False
                    if not ok: break
                if not ok: break
            if ok:
                sys.stderr.write("epilogue fill: num=%d ends at gap %d\n" % (num, k)); done = True; break
        assert done
    pos_ = {}
    for k in range(NM + 1):
        for ins in gaps[k]:
            if ins.tag: pos_[ins.tag] = k
    md = min([k - pos_[n] for k in range(NM + 1) for ins in gaps[k] for n in ins.needs if n[0] == 'wd' and n in pos_] + [9999])
    assert md >= 50, md
    seq = []
    assert not gaps[NM + 1]
    for k in range(NM + 1):
        items = [x for x in gaps[k] if x.t.startswith("s_")] + [x for x in gaps[k] if not x.t.startswith("s_")]
        if k < NM: items.append(mf[k])
        tags_here = set(x.tag for x in items if x.tag)
        needs = []
        for x in items:
            for n_ in x.needs:
                assert n_ not in tags_here
                needs.append(n_)
        for idx, x in enumerate(items):
            y = I(x.t, x.tag, x.cls, needs if idx == 0 else [])
            y.gap = k; seq.append(y)
    return seq

def rename_exit(q):
    r = []
    for t in q:
        if t[0] == 'xr': r.append(('xr', 0, t[2]) if t[1] == 'n' else ('old',))
        elif t[0] in ('wt', 'wd') and t[1] in ('A2', 'B2'): r.append((t[0], t[1][0]) + t[2:])
        else: r.append(('old',))
    return r

def simulate(seq, entry, forced=None):
    vq, lq = list(entry[0]), list(entry[1])
    issued = set(entry[2])
    waits = {}; pos = {}
    for i, ins in enumerate(seq):
        vm = lg = None
        for n in ins.needs:
            assert n in issued, ("need not issued", n, ins.t)
            if n in vq:
                c = len(vq) - 1 - vq.index(n); vm = c if vm is None else min(vm, c)
            if n in lq:
                c = len(lq) - 1 - lq.index(n); lg = c if lg is None else min(lg, c)
        g_ = getattr(ins, 'gap', None)
        if g_ is not None:
            if vm is not None:
                old_ = [j for j, t in enumerate(vq) if pos.get(t, -999) <= g_ - VOLD]
                if old_: vm = min(vm, len(vq) - 1 - max(old_))
            if lg is not None:
                old_ = [j for j, t in enumerate(lq) if pos.get(t, -999) <= g_ - LOLD]
                if old_: lg = min(lg, len(lq) - 1 - max(old_))
        if forced and i in forced:
            fv, fl = forced[i]
            if fv is not None: vm = fv if vm is None else min(vm, fv)
            if fl is not None: lg = fl if lg is None else min(lg, fl)
        if vm is not None:
            assert vm <= 63
            if vm < len(vq): vq = vq[len(vq) - vm:] if vm else []
        if lg is not None:
            lg = min(lg, 15)
            if lg < len(lq): lq = lq[len(lq) - lg:] if lg else []
        if vm is not None or lg is not None: waits[i] = (vm, lg)
        if ins.cls == 'v': vq.append(ins.tag)
        if ins.cls == 'l': lq.append(ins.tag)
        if ins.tag:
            issued.add(ins.tag); pos[ins.tag] = getattr(ins, 'gap', -999)
    return waits, (rename_exit(vq), rename_exit(lq), frozenset(t for t in rename_exit(sorted(issued, key=str)) if t != ('old',)))

def merge(w1, w2):
    r = dict(w1)
    for i, (v, l) in w2.items():
        if i in r:
            a, b = r[i]
            v2 = a if v is None else (v if a is None else min(a, v))
            l2 = b if l is None else (l if b is None else min(b, l))
            r[i] = (v2, l2)
        else: r[i] = (v, l)
    return r

def emit(seq, waits, stamps_at=()):
    nm = 0
    for i, ins in enumerate(seq):
        if ins.t.startswith("v_mfma"):
            if nm in stamps_at: stamp()
            nm += 1
        if i in waits:
            v, l = waits[i]
            w = []
            if v is not None: w.append("vmcnt(%d)" % v)
            if l is not None: w.append("lgkmcnt(%d)" % l)
            e("s_waitcnt " + " ".join(w))
        if ins.t == "STAMP": stamp()
        elif ins.t == "PFSLOT":
            lab("L_pf")
            e("global_load_dword v44, v47, s[88:89]")
            lab("L_mid2")
        else: e(ins.t)
    return
def emit_old(seq, waits):
    for i, ins in enumerate(seq):
        if i in waits:
            v, l = waits[i]
            w = []
            if v is not None: w.append("vmcnt(%d)" % v)
            if l is not None: w.append("lgkmcnt(%d)" % l)
            e("s_waitcnt " + " ".join(w))
        e(ins.t)

NE7 = int(os.environ.get("NE7", "9"))
NE7F = int(os.environ.get("NE7F", "10"))
NE7G = {15: int(os.environ.get("NE7G15", "10")), 14: int(os.environ.get("NE7G14", "9"))}
NBIG = int(os.environ.get("NBIG", "160"))

def out_switch():
    e("s_add_u32 s%d, s%d, s%d" % (S_OSRD, S_OPTR, S_NB))
    e("s_addc_u32 s%d, s%d, 0" % (S_OSRD + 1, S_OPTR + 1))
    e("s_add_u32 s%d, s%d, s%d" % (S_OBASE, S_NTB, S_OCOL))
    e("v_mad_i32_i24 v%d, v%d, s%d, v%d" % (V_OOFF, V_M, S_K, V_OOFF))
    e("s_movk_i32 s%d, 100" % S_DC)
    e("s_movk_i32 s%d, 100" % S_DW)
    e("s_mov_b32 s%d, 6" % S_CNT)

def tail(S, ne):
    cm("exposed epilogue")
    e("s_nop 7")
    for (p, j) in BLOCKS(S)[ne:]:
        for slt in epi_block(p, j, EPI_TB):
            for ins in slt: e(ins.t)
        e("s_nop 1")
    stamp()
    e("s_waitcnt vmcnt(0) lgkmcnt(0)")
    e("s_endpgm")

def main_kernel():
    K = NAME + "_kernel"
    out.append(".globl " + K); out.append(".p2align 8"); out.append(".type %s,@function" % K)
    lab(K)
    e("s_load_dwordx8 s[%d:%d], s[0:1], 0" % (S_XPTR, S_XPTR + 7))
    if STAMP: e("s_load_dwordx2 s[%d:%d], s[0:1], 32" % (S_WSP, S_WSP + 1))
    e("s_cmp_ge_u32 s2, 256")
    e("s_cbranch_scc1 L_done")
    e("s_and_b32 s%d, s2, 7" % S_T0)
    e("s_lshr_b32 s%d, s2, 3" % (S_T0 + 1))
    e("s_and_b32 s%d, s%d, 3" % (S_NT, S_T0 + 1))
    e("s_lshr_b32 s%d, s%d, 2" % (S_T0 + 1, S_T0 + 1))
    e("s_lshl_b32 s%d, s%d, 3" % (S_T0 + 1, S_T0 + 1))
    e("s_add_u32 s%d, s%d, s%d" % (S_T0, S_T0, S_T0 + 1))
    e("s_cmp_ge_u32 s%d, 32" % S_T0)
    e("s_cselect_b32 s%d, %d, 0" % (S_T0 + 5, BATCHB))
    e("s_and_b32 s%d, s%d, 31" % (S_T0, S_T0))
    e("s_lshl_b32 s%d, s%d, 18" % (S_TB, S_T0))
    e("s_sub_u32 s%d, s%d, 0x2000" % (S_T0 + 2, S_TB))
    e("s_getpc_b64 s[86:87]")
    lab("L_pc")
    e("s_add_u32 s88, s86, L_disp-L_pc")
    e("s_addc_u32 s89, s87, 0")
    e("s_add_u32 s86, s86, L_c0-L_pc")
    e("s_addc_u32 s87, s87, 0")
    e("v_lshlrev_b32 v47, 6, v0")
    e("global_load_dword v44, v47, s[86:87]")
    e("v_lshrrev_b32 v%d, 6, v0" % V_T)
    e("v_and_b32 v%d, 63, v0" % (V_T + 1))
    L = V_T + 1
    e("v_lshrrev_b32 v%d, 2, v%d" % (V_WOFF, L))
    e("v_readfirstlane_b32 s3, v%d" % V_T)
    e("v_lshlrev_b32 v%d, 11, v%d" % (V_WOFF, V_WOFF))
    e("v_and_b32 v%d, 3, v%d" % (V_T + 2, L))
    e("v_lshl_add_u32 v%d, v%d, 4, v%d" % (V_WOFF, V_T + 2, V_WOFF))
    SG = V_T + 2; PI = V_T + 3; C = V_T + 4; MP = V_T + 5; F = V_T + 6; SG0 = V_T + 7
    e("v_lshrrev_b32 v%d, 3, v%d" % (SG0, L))
    e("v_and_b32 v%d, 7, v%d" % (PI, L))
    e("s_lshl_b32 s%d, s%d, 2" % (S_T0, S_NT))
    e("s_add_u32 s%d, s%d, s3" % (S_T0, S_T0))
    e("s_lshl_b32 s%d, s%d, 6" % (S_OCOL, S_T0))
    e("s_mul_i32 s%d, s3, 20480" % S_WL)
    e("s_add_u32 s%d, s%d, %d" % (S_WL, S_WL, WL1 - 20480))
    e("s_cmp_eq_u32 s3, 0")
    e("s_cselect_b32 s%d, %d, s%d" % (S_WL, WL0, S_WL))
    e("s_mov_b32 s%d, %d" % (S_WSRD + 2, WPB))
    e("s_mov_b32 s%d, 0x20000" % (S_WSRD + 3))
    e("s_mov_b32 s%d, 0x20000" % (S_XSRD + 3))
    for tap in range(5):
        for dh in range(2): e("s_mov_b32 s%d, %d" % (S_WC + tap * 2 + dh, tap * 1048576 + dh * 32768))
    e("s_lshl_b32 s%d, s3, 6" % (S_T0 + 3))
    e("s_lshl_b32 s%d, s3, 3" % (S_T0 + 4))
    e("s_add_u32 s%d, s%d, 256" % (S_T0 + 4, S_T0 + 4))
    e("s_lshl_b32 s%d, s3, 13" % S_M0)
    e("s_lshl_b32 s%d, s3, 10" % S_M0H)
    e("s_cmp_lt_u32 s3, 2")
    e("s_mov_b32 s%d, %d" % (S_T0, XSCRATCH - 2048))
    e("s_cselect_b32 s%d, 0x8000, s%d" % (S_T0, S_T0))
    e("s_cselect_b32 s%d, 0x%x, 0" % (S_HX, SLOT_XOR))
    e("s_cselect_b32 s%d, 0, 0x80000000" % S_HEXEC)
    e("s_add_u32 s%d, s%d, s%d" % (S_M0H, S_M0H, S_T0))
    e("s_mov_b32 s%d, %d" % (S_XSRD + 2, BATCHB))
    e("v_mov_b32 v%d, 0" % V_MP)
    e("v_mov_b32 v%d, 0" % (V_MP + 1))
    for k in range(9):
        if k < 8:
            e("v_add_u32 v%d, s%d, v%d" % (SG, S_T0 + 3, SG0))
            e("s_add_u32 s%d, s%d, 8" % (S_T0 + 3, S_T0 + 3))
        else:
            e("v_add_u32 v%d, s%d, v%d" % (SG, S_T0 + 4, SG0))
        e("v_mul_u32_u24 v%d, 241, v%d" % (C, SG))
        e("v_lshrrev_b32 v%d, 12, v%d" % (C, C))
        e("v_mul_u32_u24 v%d, 17, v%d" % (MP, C))
        e("v_sub_u32 v%d, v%d, v%d" % (MP, SG, MP))
        e("v_bfe_u32 v%d, v%d, 1, 3" % (F, MP))
        e("v_xor_b32 v%d, v%d, v%d" % (F, F, PI))
        e("v_lshl_add_u32 v%d, v%d, 4, v%d" % (C, MP, C))
        e("v_lshlrev_b32 v%d, 4, v%d" % (F, F))
        e("v_lshl_add_u32 v%d, v%d, 10, v%d" % (V_DCUR + k, C, F))
        e("v_add_u32 v%d, s%d, v%d" % (V_DCUR + k, S_T0 + 2, V_DCUR + k))
        e("v_lshl_or_b32 v%d, v%d, %d, v%d" % (V_MP + k // 6, MP, 5 * (k % 6), V_MP + k // 6))
    e("v_lshrrev_b32 v%d, 1, v%d" % (C, V_DCUR + 8))
    e("v_or_b32 v%d, s%d, v%d" % (C, S_HEXEC, C))
    e("s_cmp_lt_u32 s3, 2")
    e("s_cselect_b64 vcc, -1, 0")
    e("v_cndmask_b32 v%d, v%d, v%d, vcc" % (V_DCUR + 8, C, V_DCUR + 8))
    e("s_waitcnt lgkmcnt(0)")
    e("s_add_u32 s%d, s%d, s%d" % (S_XSRD, S_XPTR, S_T0 + 5))
    e("s_addc_u32 s%d, s%d, 0" % (S_XSRD + 1, S_XPTR + 1))
    e("s_add_u32 s%d, s%d, s%d" % (S_WSRD, S_XPTR + 2, S_OCOL))
    e("s_addc_u32 s%d, s%d, 0" % (S_WSRD + 1, S_XPTR + 3))
    e("s_mov_b64 s[%d:%d], s[%d:%d]" % (S_WB0, S_WB0 + 1, S_WSRD, S_WSRD + 1))
    e("s_mov_b32 s%d, s22" % S_DSRD)
    e("s_mov_b32 s%d, s23" % (S_DSRD + 1))
    e("s_mov_b32 s%d, s3" % S_WAVE)
    if STAMP:
        e("s_add_u32 s%d, s%d, 0x800000" % (S_SSRD, S_WSP))
        e("s_addc_u32 s%d, s%d, 0" % (S_SSRD + 1, S_WSP + 1))
        e("s_mov_b32 s%d, 0x40000" % (S_SSRD + 2))
        e("s_mov_b32 s%d, 0x20000" % (S_SSRD + 3))
        e("s_lshl_b32 s%d, s2, 9" % S_SOFF)
    stamp()
    pro = []
    def P(x):
        for y in (x if isinstance(x, tuple) else (x,)): pro.append(y if isinstance(y, I) else I(y))
    wd = [wdma('A2', None, tap, dh, hf) for (hf, tap) in WORDER for dh in range(2)]
    def PD(pair): P(pair[0]); P("s_nop 0"); P(pair[1])
    for k in range(9): PD(xdma(k))
    for k in range(10): PD(wd[k])
    for s_ in XDMA_POST: P(s_)
    KQ = V_T + 3; TMP = V_T + 4; TMP2 = V_T + 5; TMP3 = V_T + 6
    M = V_M
    P("v_and_b32 v%d, 15, v%d" % (M, L))
    P("v_lshrrev_b32 v%d, 4, v%d" % (KQ, L))
    P("v_lshrrev_b32 v%d, 1, v%d" % (TMP, KQ))
    P("v_lshlrev_b32 v%d, 11, v%d" % (TMP, TMP))
    P("v_and_b32 v%d, 1, v%d" % (TMP2, KQ))
    P("v_lshl_add_u32 v%d, v%d, 9, v%d" % (TMP, TMP2, TMP))
    P("v_lshl_add_u32 v%d, v%d, 4, v%d" % (TMP, M, TMP))
    P("v_add_u32 v%d, s%d, v%d" % (V_WTR, S_WL, TMP))
    P("v_lshlrev_b32 v%d, 14, v%d" % (V_OOFF, M))
    P("v_lshl_add_u32 v%d, v%d, 4, v%d" % (V_OOFF, KQ, V_OOFF))
    for s in range(2):
        for ks in range(2):
            dst = V_XA + s * 2 + ks
            P("v_add_u32 v%d, %d, v%d" % (TMP, s, M))
            P("v_bfe_u32 v%d, v%d, 1, 3" % (TMP2, TMP))
            P("v_add_u32 v%d, %d, v%d" % (TMP3, 4 * ks, KQ))
            P("v_xor_b32 v%d, v%d, v%d" % (TMP2, TMP2, TMP3))
            P("v_lshlrev_b32 v%d, 4, v%d" % (TMP2, TMP2))
            P("v_lshl_add_u32 v%d, v%d, 7, v%d" % (dst, TMP, TMP2))
    P("s_mov_b32 s%d, 0x4038aa3b" % S_C1)
    P("s_mov_b32 s%d, 0xbfb8aa3b" % S_C2)
    P("s_mov_b32 s%d, 0x41f00000" % S_C3)
    P("s_mov_b32 s%d, 0x20000" % (S_OSRD + 3))
    P("s_mov_b32 s%d, %d" % (S_OSRD + 2, BATCHB))
    P("s_movk_i32 s%d, 256" % (S_DSRD + 2))
    P("s_mov_b32 s%d, 0x20000" % (S_DSRD + 3))
    P("s_add_u32 s%d, s%d, s%d" % (S_OSRD, S_OPTR, S_T0 + 5))
    P("s_addc_u32 s%d, s%d, 0" % (S_OSRD + 1, S_OPTR + 1))
    P("s_add_u32 s%d, s%d, s%d" % (S_OBASE, S_TB, S_OCOL))
    P("s_mov_b32 s%d, 6" % S_DC)
    P("s_mov_b32 s%d, 7" % S_TRY)
    P("s_cmp_eq_u32 s%d, 0" % S_WAVE)
    P("s_cselect_b32 s%d, 6, 64" % S_DW)
    P("s_getreg_b32 s%d, hwreg(HW_REG_XCC_ID, 0, 3)" % S_XCC)
    P("s_mov_b32 s%d, 6" % S_CNT)
    P("v_mov_b32 v%d, %d" % (V_TMP, RANK_LDS))
    P(I("s_barrier", needs=[('xd', k) for k in range(9)]))
    for q in range(PRE): P(xread(0, 0, q, q, ('xr', 'n', q)))
    for tap in T1:
        for nb in range(2):
            for t in range(2): P(wtr('A2', 0, tap, nb, t))
    w, st_pro = simulate(pro, ([('old',)], [], frozenset()))
    emit(pro, w)
    stamp()
    B0P = int(os.environ.get('B0P', '40'))
    prev = [('prev',) + b for b in BLOCKS(16)[NE7:]]
    makers = {
        'c0': lambda r: plan(COLD, first=True, cold=True, reserve=r),
        'm16': lambda r: plan(NAT(16), reserve=r, pf='disp'),
        'c7': lambda r: plan(PM7, last=True, epi=[('own',) + b for b in BLOCKS(16)[:NE7]], reserve=r, pf=True),
        'p16': lambda r: plan(REO2(16), first=True, b_start=B0P, epi=prev, reserve=r),
        'f16': lambda r: plan(PM(16), final=True, epi=[('own',) + b for b in BLOCKS(16)[:NE7F]], reserve=r),
    }
    succ = {'c0': ['m16'], 'm16': ['m16', 'c7', 'f16'], 'c7': ['p16'], 'p16': ['m16'], 'f16': []}
    for S_ in SMALL:
        makers['p%d' % S_] = (lambda S_: lambda r: plan(REO2(S_), first=True, b_start=B0P, epi=prev, reserve=r, S=S_))(S_)
        makers['m%d' % S_] = (lambda S_: lambda r: plan(NAT(S_), reserve=r, pf=True, S=S_))(S_)
        makers['f%d' % S_] = (lambda S_: lambda r: plan(PM(S_), final=True, epi=[('own',) + b for b in BLOCKS(S_)[:NE7G[S_]]], reserve=r, S=S_))(S_)
        succ['c7'].append('p%d' % S_); succ['p%d' % S_] = ['m%d' % S_]; succ['m%d' % S_] = ['m%d' % S_, 'f%d' % S_]; succ['f%d' % S_] = []
    res = {n: {} for n in makers}
    for outer in range(8):
        sq = {n: makers[n](res[n]) for n in makers}
        ent = {n: [] for n in makers}; ent['c0'] = [st_pro]
        wt = {n: {} for n in makers}
        for it in range(12):
            changed = False
            for n in makers:
                nw = dict(wt[n])
                for en in ent[n]: nw = merge(nw, simulate(sq[n], en, wt[n])[0])
                if nw != wt[n]: wt[n] = nw; changed = True
                for en in ent[n]:
                    ex = simulate(sq[n], en, wt[n])[1]
                    for m_ in succ[n]:
                        if ex not in ent[m_]: ent[m_].append(ex); changed = True
            if not changed: break
        assert not changed
        ch2 = False; rep = []
        for n in makers:
            tot = {}
            for i, ins in enumerate(sq[n]):
                if not ins.t.startswith("v_mfma"): tot[ins.gap] = tot.get(ins.gap, 0) + cost(ins)[0]
                if i in wt[n]: tot[ins.gap] = tot.get(ins.gap, 0) + 4
            rep.append((n, sum(max(0, v - 12) for v in tot.values()), len(wt[n])))
            for i in wt[n]:
                g_ = sq[n][i].gap
                if tot[g_] > 12 and g_ not in res[n]:
                    res[n][g_] = 4; ch2 = True
        sys.stderr.write("outer %d %s\n" % (outer, rep))
        if not ch2: break
    lab("L_c0")
    cm("chunk 0 (tile 0)")
    emit(sq['c0'], wt['c0'])
    out.append(".p2align 6")
    lab("L_mid")
    if os.environ.get("LOOPST"): stamp()
    emit(sq['m16'], wt['m16'])
    e("s_sub_u32 s%d, s%d, 1" % (S_DC, S_DC))
    e("s_sub_u32 s%d, s%d, 1" % (S_DW, S_DW))
    e("s_sub_u32 s%d, s%d, 1" % (S_CNT, S_CNT))
    e("s_cmp_lg_u32 s%d, 0" % S_CNT)
    e("s_cbranch_scc1 L_mid")
    stamp()
    e("s_cmp_lg_u32 s%d, 0" % S_DC)
    e("s_cbranch_scc1 L_f16")
    e("s_branch L_c7")
    lab("L_disp")
    cm("wave 0 only: time one chunk, publish per-XCC time, claim the second tile from the matching end of this n-tile's list")
    t = S_T0
    e("s_cmp_eq_u32 s%d, 5" % S_DW)
    e("s_cbranch_scc0 L_d4")
    e("s_memrealtime s[94:95]")
    e("s_branch L_pf")
    lab("L_d4")
    e("s_cmp_eq_u32 s%d, 4" % S_DW)
    e("s_cbranch_scc0 L_d3")
    e("s_cmp_lg_u32 s%d, 0" % S_NT)
    e("s_cbranch_scc1 L_pf")
    e("s_memrealtime s[96:97]")
    e("s_lshl_b32 s%d, s%d, 2" % (t + 1, S_XCC))
    e("s_waitcnt lgkmcnt(0)")
    e("s_sub_u32 s%d, s96, s94" % t)
    e("s_min_u32 s%d, s%d, 4095" % (t, t))
    e("s_add_u32 s%d, s%d, 0x100000" % (t, t))
    e("v_mov_b32 v%d, s%d" % (V_RANK, t))
    e("s_mov_b64 exec, 1")
    e("buffer_atomic_add v%d, off, s[%d:%d], s%d offset:128" % (V_RANK, S_DSRD, S_DSRD + 3, t + 1))
    e("s_mov_b64 exec, -1")
    e("s_branch L_mid2")
    lab("L_d3")
    e("s_cmp_eq_u32 s%d, 3" % S_DW)
    e("s_cbranch_scc0 L_d2")
    e("v_lshlrev_b32 v%d, 2, v%d" % (V_T, V_M))
    e("s_mov_b64 exec, 0xff")
    e("buffer_load_dword v%d, v%d, s[%d:%d], 0 offen offset:128 sc0 sc1" % (V_RANK, V_T, S_DSRD, S_DSRD + 3))
    e("s_mov_b64 exec, -1")
    e("s_branch L_mid2")
    lab("L_d2")
    e("s_cmp_eq_u32 s%d, 2" % S_DW)
    e("s_cbranch_scc0 L_d1")
    e("s_waitcnt vmcnt(40)")
    e("v_readlane_b32 s%d, v%d, s%d" % (t, V_RANK, S_XCC))
    e("v_lshrrev_b32 v%d, 20, v%d" % (V_T, V_RANK))
    e("v_and_b32 v%d, 0xfffff, v%d" % (V_T + 1, V_RANK))
    e("s_lshr_b32 s%d, s%d, 20" % (t + 1, t))
    e("s_and_b32 s%d, s%d, 0xfffff" % (t, t))
    e("v_mul_u32_u24 v%d, s%d, v%d" % (V_T + 1, t + 1, V_T + 1))
    e("v_mul_u32_u24 v%d, s%d, v%d" % (V_T, t, V_T))
    e("s_mov_b64 exec, 0xff")
    e("v_cmp_gt_u32 vcc, v%d, v%d" % (V_T + 1, V_T))
    e("v_cmp_eq_u32 s[%d:%d], v%d, v%d" % (t + 2, t + 3, V_T + 1, V_T))
    e("s_mov_b64 exec, 1")
    e("v_mov_b32 v%d, 1" % V_RANK)
    e("s_bfm_b32 s%d, s%d, 0" % (t + 1, S_XCC))
    e("s_nop 2")
    e("s_and_b32 s%d, s%d, s%d" % (t + 2, t + 2, t + 1))
    e("s_or_b32 s%d, s%d, vcc_lo" % (t + 2, t + 2))
    e("s_bcnt1_i32_b32 s%d, s%d" % (S_PREF, t + 2))
    e("s_lshl_b32 s%d, s%d, 5" % (t + 1, S_NT))
    e("s_lshl_b32 s%d, s%d, 2" % (t, S_PREF))
    e("s_add_u32 s%d, s%d, s%d" % (t + 1, t + 1, t))
    e("buffer_atomic_add v%d, off, s[%d:%d], s%d sc0" % (V_RANK, S_DSRD, S_DSRD + 3, t + 1))
    e("s_mov_b64 exec, -1")
    e("s_branch L_mid2")
    lab("L_d1")
    e("s_waitcnt vmcnt(40)")
    lab("L_d1b")
    e("v_readfirstlane_b32 s%d, v%d" % (t, V_RANK))
    e("s_nop 3")
    e("s_cmp_lt_u32 s%d, 8" % t)
    e("s_cbranch_scc1 L_d1c")
    cm("region full (unusual placement or snapshot): take the next region that still has a free slot")
    e("s_add_u32 s%d, s%d, 1" % (S_PREF, S_PREF))
    e("s_and_b32 s%d, s%d, 7" % (S_PREF, S_PREF))
    e("s_lshl_b32 s%d, s%d, 5" % (t + 1, S_NT))
    e("s_lshl_b32 s%d, s%d, 2" % (t, S_PREF))
    e("s_add_u32 s%d, s%d, s%d" % (t + 1, t + 1, t))
    e("v_mov_b32 v%d, 1" % V_RANK)
    e("s_mov_b64 exec, 1")
    e("buffer_atomic_add v%d, off, s[%d:%d], s%d sc0" % (V_RANK, S_DSRD, S_DSRD + 3, t + 1))
    e("s_mov_b64 exec, -1")
    e("s_sub_u32 s%d, s%d, 1" % (S_TRY, S_TRY))
    e("s_waitcnt vmcnt(0)")
    e("s_cmp_lg_u32 s%d, 0" % S_TRY)
    e("s_cbranch_scc1 L_d1b")
    e("v_readfirstlane_b32 s%d, v%d" % (t, V_RANK))
    e("s_nop 3")
    e("s_and_b32 s%d, s%d, 7" % (t, t))
    lab("L_d1c")
    e("s_lshl_b32 s%d, s%d, 3" % (t + 1, S_PREF))
    e("s_add_u32 s%d, s%d, s%d" % (t, t, t + 1))
    e("v_mov_b32 v%d, s%d" % (V_RANK, t))
    e("ds_write_b32 v%d, v%d" % (V_TMP, V_RANK))
    e("s_branch L_pf")
    lab("L_c7")
    cm("decode the claimed second tile")
    r = S_T0
    e("ds_read_b32 v%d, v%d" % (V_RANK, V_TMP))
    e("s_waitcnt lgkmcnt(0)")
    e("v_readfirstlane_b32 s%d, v%d" % (r, V_RANK))
    e("s_nop 3")
    e("s_lshr_b32 s%d, s%d, 3" % (r + 1, r))
    e("s_and_b32 s%d, s%d, 3" % (r + 2, r))
    e("s_bitcmp1_b32 s%d, 2" % r)
    e("s_cselect_b32 s%d, %d, 0" % (S_NB, BATCHB))
    classes = []
    base = 8192
    for k_, S_ in enumerate(PATTERN):
        if not classes or classes[-1][0] != S_: classes.append((S_, k_, base))
        base += 64 * S_
    S0, k0, b0 = classes[0]
    e("s_movk_i32 s%d, %d" % (S_SMALL, S0))
    e("s_mov_b32 s%d, %d" % (r + 3, b0 - 64 * S0 * k0))
    for (S_, k_, b_) in classes[1:]:
        e("s_cmp_ge_u32 s%d, %d" % (r + 1, k_))
        e("s_cselect_b32 s%d, %d, s%d" % (S_SMALL, S_, S_SMALL))
        e("s_cselect_b32 s%d, %d, s%d" % (r + 3, b_ - 64 * S_ * k_, r + 3))
    e("s_lshl_b32 s%d, s%d, 2" % (r + 1, r + 1))
    e("s_add_u32 s%d, s%d, s%d" % (r + 1, r + 1, r + 2))
    e("s_mul_i32 s%d, s%d, s%d" % (r + 1, r + 1, S_SMALL))
    e("s_lshl_b32 s%d, s%d, 4" % (r + 1, r + 1))
    e("s_add_u32 s%d, s%d, s%d" % (r + 1, r + 1, r + 3))
    e("s_lshl_b32 s%d, s%d, 10" % (S_NTB, r + 1))
    e("s_sub_u32 s%d, s%d, s%d" % (S_DELTA, S_NTB, S_TB))
    e("s_mov_b32 s%d, L_p16-L_c0" % (r + 1))
    for S_ in SMALL:
        e("s_cmp_eq_u32 s%d, %d" % (S_SMALL, S_))
        e("s_cselect_b32 s%d, L_p%d-L_c0, s%d" % (r + 1, S_, r + 1))
    e("s_add_u32 s88, s86, s%d" % (r + 1))
    e("s_addc_u32 s89, s87, 0")
    e("s_sub_u32 s%d, s%d, 16" % (S_K, S_SMALL))
    e("s_lshl_b32 s%d, s%d, 10" % (S_K, S_K))
    cm("chunk 7 (tile 0)")
    emit(sq['c7'], wt['c7'])
    stamp()
    e("v_min_u32 v47, L_done-L_f%d-4, v47" % SMALL[-1])
    for S_ in SMALL:
        e("s_cmp_eq_u32 s%d, %d" % (S_SMALL, S_))
        e("s_cbranch_scc1 L_p%d" % S_)
    lab("L_p16")
    cm("chunk 0 (tile 1, 256 rows)")
    emit(sq['p16'], wt['p16'])
    out_switch()
    e("s_add_u32 s88, s86, L_f16-L_c0")
    e("s_addc_u32 s89, s87, 0")
    stamp()
    e("s_branch L_mid")
    lab("L_f16")
    cm("chunk 7 (tile 1, 256 rows)")
    emit(sq['f16'], wt['f16'])
    stamp()
    tail(16, NE7F)
    for S_ in SMALL:
        lab("L_p%d" % S_)
        cm("chunk 0 (tile 1, %d rows)" % (16 * S_))
        emit(sq['p%d' % S_], wt['p%d' % S_])
        out_switch()
        e("s_add_u32 s88, s86, L_f%d-L_c0" % S_)
        e("s_addc_u32 s89, s87, 0")
        stamp()
        out.append(".p2align 6")
        lab("L_mid%d" % S_)
        if os.environ.get("LOOPST"): stamp()
        emit(sq['m%d' % S_], wt['m%d' % S_])
        e("s_sub_u32 s%d, s%d, 1" % (S_CNT, S_CNT))
        e("s_cmp_lg_u32 s%d, 0" % S_CNT)
        e("s_cbranch_scc1 L_mid%d" % S_)
        stamp()
        lab("L_f%d" % S_)
        cm("chunk 7 (tile 1, %d rows)" % (16 * S_))
        emit(sq['f%d' % S_], wt['f%d' % S_])
        stamp()
        tail(S_, NE7G[S_])
    lab("L_done")
    e("s_endpgm")

hdr = open("cdna_kernels/%s.s.ref" % NAME).read().split("\n")
for l in hdr:
    if l.startswith(";") and "@launch" not in l and "Override" not in l and "grid=ceil" not in l:
        out.append(l)
out.append("; @launch grid=(256,1,1) block=(256,1,1) lds=%d" % LDS_BYTES)
out.append('.amdgcn_target "amdgcn-amd-amdhsa--gfx950"')
out.append(".text")
main_kernel()
out.append('.section .rodata,"a"')
out.append(".p2align 6")
out.append(".amdhsa_kernel %s_kernel" % NAME)
out += ["  .amdhsa_next_free_vgpr 512", "  .amdhsa_next_free_sgpr 100", "  .amdhsa_accum_offset 256",
        "  .amdhsa_group_segment_fixed_size 0", "  .amdhsa_kernarg_size 40", "  .amdhsa_user_sgpr_count 2",
        "  .amdhsa_user_sgpr_kernarg_segment_ptr 1", "  .amdhsa_system_sgpr_workgroup_id_x 1", ".end_amdhsa_kernel"]
dst = sys.argv[1] if len(sys.argv) > 1 else "cdna_kernels/%s.s" % NAME
open(dst, "w").write("\n".join(out) + "\n")
print("wrote", dst, len(out), "lines")
```

```python
import sys, os, re, copy

NAME = "standalone__autoregressive_conv_wavernn__speech"
T = 16000
BATCHB = T * 1024
WPB = 5 * 512 * 1024 * 2
SLOT_XOR = 0x10000
CLS = 17 * 128
WL0 = 34816
WL1 = 0x10000 + 34816
LDS_BYTES = WL1 + 3 * 20480
STAMP = os.environ.get("STAMP") is not None
MAPPING = int(os.environ.get("MAPPING", "0"))
CAP = int(os.environ.get("CAP", "8"))
WSPACE = int(os.environ.get("WSPACE", "13"))
XSPACE = int(os.environ.get("XSPACE", "36"))
XLAT = int(os.environ.get("XLAT", "150"))
TRSP = int(os.environ.get("TRSP", "3"))
VOLD = int(os.environ.get("VOLD", "120"))
LOLD = int(os.environ.get("LOLD", "12"))
PF = os.environ.get("NOPF") is None
XNT = "" if os.environ.get("NOXNT") else " nt"

out = []
def e(s): out.append(" " + s)
def lab(s): out.append(s + ":")
def cm(s): out.append("    ; " + s)

def WREGN(st, tap, nb): return st * 80 + (tap * 4 + nb) * 4
def WREG(st, tap, nb):
    b = WREGN(st, tap, nb); return "a[%d:%d]" % (b, b + 3)
def XREG(q):
    b = 160 + q * 4; return "a[%d:%d]" % (b, b + 3)
NVACC = 52
def ACC(p, j, nb):
    idx = (p * 8 + j) * 4 + nb
    if idx < NVACC: return ('v', 48 + idx * 4)
    return ('a', 208 + (idx - NVACC) * 4)
def ACCS(p, j, nb):
    k, b = ACC(p, j, nb); return "%s[%d:%d]" % (k, b, b + 3)

V_XA = 1; V_WOFF = 5; V_OOFF = 6; V_DCUR = 7
V_T = 16
V_WTR = 46
S_XSRD = 4; S_WSRD = 8; S_OSRD = 12
S_XPTR = 16; S_OPTR = 20
S_WAVE = 22; S_NT = 24; S_DC = 25
S_DSRD = 64; S_NB = 68; S_NTB = 69; S_NOCOL = 70; S_K = 71; S_SMALL = 72; S_DELTA = 73
S_DT = 28; S_TRY = 70; S_DW = 23; S_PREF = 74; S_XCC = 75

V_MP = 36; V_TMP = 38; V_M = 39; V_RANK = 45
RANK_LDS = 57344
S_M0 = 26; S_M0H = 27; S_WS = 28; S_WL = 29; S_CNT = 30
S_HEXEC = 32
S_T0 = 34
S_OBASE = 40; S_TILE = 41; S_C1 = 42; S_C2 = 43; S_TB = 44; S_OCOL = 45; S_ST = 46
S_SSRD = 48; S_SOFF = 52; S_WSP = 60
S_C3 = 47; S_HX = 31; S_WB0 = 62; S_WC = 76
XSCRATCH = 55296

_stn = [0]
NOSTAMP = [False]
def stamp():
    if not STAMP or NOSTAMP[0]: return
    _stn[0] += 1
    e("s_memtime s[56:57]"); e("s_memrealtime s[58:59]"); e("s_waitcnt lgkmcnt(0)")
    e("s_cmp_lg_u32 s%d, 0" % S_WAVE)
    e("s_cbranch_scc1 L_st%d" % _stn[0])
    for k in range(4): e("v_mov_b32 v%d, s%d" % (40 + k, 56 + k))
    e("s_mov_b64 exec, 1")
    e("buffer_store_dwordx4 v[40:43], off, s[%d:%d], s%d" % (S_SSRD, S_SSRD + 3, S_SOFF))
    e("s_mov_b64 exec, -1"); e("s_nop 1")
    lab("L_st%d" % _stn[0])
    e("s_add_u32 s%d, s%d, 16" % (S_SOFF, S_SOFF))

PRE = 6

class I:
    def __init__(self, t, tag=None, cls=None, needs=()):
        self.t = t; self.tag = tag; self.cls = cls; self.needs = list(needs)

MEMC = 4
def cost(ins):
    op = ins.t.split()[0]
    if op in ("v_exp_f32", "v_rcp_f32"): return (8, 8)
    if op.startswith("s_"): return (4, 0)
    return (4, 4)

def xread(ks, p, q, sl, tag, S=16):
    r = p + 2 * q
    s = 1 if r >= S else 0
    c = r - S * s
    return I("ds_read_b128 %s, v%d offset:%d" % (XREG(sl), V_XA + s * 2 + ks, c * CLS), tag, 'l')

def xsrd_tile_ins():
    ins = []
    ins.append(("s_add_u32 s%d, s%d, s%d" % (S_XSRD, S_XPTR, S_NB), "s_addc_u32 s%d, s%d, 0" % (S_XSRD + 1, S_XPTR + 1)))
    for k in range(9):
        ins.append(("v_bfe_u32 v%d, v%d, %d, 5" % (V_TMP, V_MP + k // 6, 5 * (k % 6)),
                    "v_mad_i32_i24 v%d, v%d, s%d, v%d" % (V_DCUR + k, V_TMP, S_K, V_DCUR + k)))
        ins.append(("v_add_u32 v%d, s%d, v%d" % (V_DCUR + k, S_DELTA, V_DCUR + k),))
    return ins

def xdma(k):
    ld = "buffer_load_dwordx4 v%d, s[%d:%d], 0 offen%s lds" % (V_DCUR + k, S_XSRD, S_XSRD + 3, XNT)
    m = ("s_add_u32 m0, s%d, %d" % (S_M0, k * 1024)) if k < 8 else ("s_mov_b32 m0, s%d" % S_M0H)
    return (I(m), I(ld, ('xd', k), 'v'))
XDMA_POST = [("s_add_u32 s%d, s%d, 128" % (S_XSRD, S_XSRD), "s_addc_u32 s%d, s%d, 0" % (S_XSRD + 1, S_XSRD + 1)),
             ("s_xor_b32 s%d, s%d, 0x%x" % (S_M0, S_M0, SLOT_XOR),),
             ("s_xor_b32 s%d, s%d, s%d" % (S_M0H, S_M0H, S_HX),)]

def wdma(sub, prev, tap, dh, hf):
    needs = [('wt', prev, tap, 2 * hf + b, t) for b in range(2) for t in range(2)] if prev else []
    return (I("s_add_u32 m0, s%d, %d" % (S_WL, tap * 4096 + dh * 2048)),
            I("buffer_load_dwordx4 v%d, s[%d:%d], s%d offen offset:%d lds" % (V_WOFF, S_WSRD, S_WSRD + 3, S_WC + tap * 2 + dh, hf * 1024),
              ('wd', sub, tap, dh, hf), 'v', needs))
def wtr(sub, st, tap, nb, t):
    b = WREGN(st, tap, nb) + 2 * t
    hf = nb >> 1
    return I("ds_read_b64_tr_b16 a[%d:%d], v%d offset:%d" % (b, b + 1, V_WTR, tap * 4096 + hf * 1024 + t * 256 + (nb & 1) * 8),
             ('wt', sub, tap, nb, t), 'l', [('wd', sub, tap, dh, hf) for dh in range(2)])
WADV = ("s_add_u32 s%d, s%d, 0x10000" % (S_WSRD, S_WSRD), "s_addc_u32 s%d, s%d, 0" % (S_WSRD + 1, S_WSRD + 1))
WRESET = ("s_mov_b32 s%d, s%d" % (S_WSRD, S_WB0), "s_mov_b32 s%d, s%d" % (S_WSRD + 1, S_WB0 + 1))

def epi_block(p, j, tb):
    sl = []
    regs = {}
    for nb in range(4):
        k, b = ACC(p, j, nb)
        for r in range(4): regs[(nb, r)] = (k, b + r)
    PK = tb
    for h in range(2):
        E = [tb + 4 + k for k in range(4)]
        G = [tb + 8 + k for k in range(4)]
        Dn = [tb + 12 + k for k in range(4)]
        src = {}; rd = []
        for k in range(4):
            kind, r = regs[(h, k)]
            if kind == 'a':
                rd.append("v_accvgpr_read_b32 v%d, a%d" % (E[k], r)); r = E[k]
            src[('e', k)] = r
            kind, r = regs[(2 + h, k)]
            if kind == 'a':
                rd.append("v_accvgpr_read_b32 v%d, a%d" % (G[k], r)); r = G[k]
            src[('g', k)] = r
        for i in range(0, len(rd), 2): sl.append(tuple(rd[i:i + 2]))
        mulE = ["v_mul_f32 v%d, s%d, v%d" % (E[k], S_C1, src[('e', k)]) for k in range(4)]
        mulG = ["v_mul_f32 v%d, s%d, v%d" % (G[k], S_C2, src[('g', k)]) for k in range(4)]
        mn = ["v_min_f32 v%d, s%d, v%d" % (E[k], S_C3, E[k]) for k in range(4)]
        eG = ["v_exp_f32 v%d, v%d" % (G[k], G[k]) for k in range(4)]
        eE = ["v_exp_f32 v%d, v%d" % (E[k], E[k]) for k in range(4)]
        aD = ["v_add_f32 v%d, 1.0, v%d" % (Dn[k], E[k]) for k in range(4)]
        den = ["v_fmac_f32 v%d, v%d, v%d" % (Dn[k], Dn[k], G[k]) for k in range(4)]
        rc = ["v_rcp_f32 v%d, v%d" % (Dn[k], Dn[k]) for k in range(4)]
        fin = ["v_fma_f32 v%d, v%d, v%d, -v%d" % (E[k], E[k], Dn[k], Dn[k]) for k in range(4)]
        cv = ["v_cvt_pk_bf16_f32 v%d, v%d, v%d" % (PK + 2 * h + k, E[2 * k], E[2 * k + 1]) for k in range(2)]
        sl += [(mulE[0], mulE[1]), (mulE[2], mulE[3]), (mn[0], mn[1]), (mn[2], mn[3]), (eE[0],), (mulG[0], mulG[1]), (eE[1],),
               (mulG[2], mulG[3]), (eE[2],), (eE[3],), (eG[0],), (aD[0], aD[1]), (eG[1],), (aD[2], aD[3]),
               (eG[2],), (eG[3],), (den[0], den[1]), (den[2], den[3]), (rc[0],), (rc[1],), (rc[2],), (rc[3],),
               (fin[0], fin[1]), (fin[2], fin[3]), (cv[0], cv[1])]
    res = [[I(x) for x in s] for s in sl]
    res.append([I("s_add_u32 s%d, s%d, %d" % (S_ST, S_OBASE, (p + 2 * j) * 1024)),
                I("buffer_store_dwordx4 v[%d:%d], v%d, s[%d:%d], s%d offen" % (PK, PK + 3, V_OOFF, S_OSRD, S_OSRD + 3, S_ST), ('st', p, j), 'v')])
    return res
def epi_block_pk(p, j, tb):
    ins = []
    PK = tb
    for h in range(2):
        E = tb + 4; G = tb + 8; Dn = tb + 12
        srcs = []
        for (nb, dst) in ((h, E), (2 + h, G)):
            k, b = ACC(p, j, nb)
            if k == 'a':
                for r in range(4): ins.append("v_accvgpr_read_b32 v%d, a%d" % (dst + r, b + r))
                b = dst
            srcs.append(b)
        pr = lambda b: "v[%d:%d]" % (b, b + 1)
        for u in (0, 2): ins.append("v_pk_mul_f32 %s, %s, s[%d:%d] op_sel_hi:[1,0]" % (pr(E + u), pr(srcs[0] + u), S_C1, S_C1 + 1))
        for u in (0, 2): ins.append("v_pk_mul_f32 %s, %s, s[%d:%d] op_sel:[0,1] op_sel_hi:[1,1]" % (pr(G + u), pr(srcs[1] + u), S_C1, S_C1 + 1))
        for k in range(4): ins.append("v_min_f32 v%d, s%d, v%d" % (E + k, S_C3, E + k))
        for k in range(4): ins.append("v_exp_f32 v%d, v%d" % (G + k, G + k))
        for k in range(4): ins.append("v_exp_f32 v%d, v%d" % (E + k, E + k))
        for u in (0, 2): ins.append("v_pk_add_f32 %s, %s, 1.0 op_sel_hi:[1,0]" % (pr(Dn + u), pr(E + u)))
        for u in (0, 2): ins.append("v_pk_fma_f32 %s, %s, %s, %s" % (pr(Dn + u), pr(Dn + u), pr(G + u), pr(Dn + u)))
        for k in range(4): ins.append("v_rcp_f32 v%d, v%d" % (Dn + k, Dn + k))
        for u in (0, 2): ins.append("v_pk_fma_f32 %s, %s, %s, %s neg_lo:[0,0,1] neg_hi:[0,0,1]" % (pr(E + u), pr(E + u), pr(Dn + u), pr(Dn + u)))
        for k in range(2): ins.append("v_cvt_pk_bf16_f32 v%d, v%d, v%d" % (PK + 2 * h + k, E + 2 * k, E + 2 * k + 1))
    ins.append("s_add_u32 s%d, s%d, %d" % (S_ST, S_OBASE, (p + 2 * j) * 1024))
    ins.append("buffer_store_dwordx4 v[%d:%d], v%d, s[%d:%d], s%d offen" % (PK, PK + 3, V_OOFF, S_OSRD, S_OSRD + 3, S_ST))
    return ins
EPI_TB = V_T

def acc_reads(t):
    m = re.match(r"v_accvgpr_read_b32 v\d+, a(\d+)", t)
    if m: return ('a', int(m.group(1)))
    m = re.match(r"v_mul_f32 v\d+, s\d+, v(\d+)", t)
    if m and int(m.group(1)) >= 48: return ('v', int(m.group(1)))
    return None

WORDER = [(hf, tap) for hf in range(2) for tap in range(5)]

ALLNB = (0, 1, 2, 3); ALLT = (0, 1, 2, 3, 4)
def G(ks, p, lo=0, hi=8, nbs=ALLNB, taps=ALLT): return (ks, p, lo, hi, nbs, taps)
def NJ(S): return ((S + 1) // 2, S // 2)
def NAT(S): return [G(ks, p, 0, NJ(S)[p]) for ks in range(2) for p in range(2)]
def PM(S): return [G(ks, p, lo, hi) for p in range(2) for (lo, hi) in ((0, 4), (4, NJ(S)[p])) for ks in range(2)]
def REO2(S): return [G(0, 0, 0, NJ(S)[0]), G(1, 0, 0, 4), G(0, 1, 0, NJ(S)[1]), G(1, 0, 4, NJ(S)[0]), G(1, 1, 0, NJ(S)[1])]
PATTERN = [int(c) for c in os.environ.get("PAT", "14,15,15,15,15,16,16,16").split(",")]
assert sum(PATTERN) * 64 == 7808 and len(PATTERN) == 8 and sorted(PATTERN) == PATTERN
SMALL = sorted(set(PATTERN) - {16}, reverse=True)
T1 = tuple(range(int(os.environ.get("CT1", "2"))))
T2 = tuple(range(len(T1), 5))
COLD = [G(0, 0, nbs=(0, 1), taps=T1), G(0, 1, nbs=(0, 1), taps=T1), G(0, 0, nbs=(0, 1), taps=T2), G(0, 1, nbs=(0, 1), taps=T2),
        G(0, 0, nbs=(2, 3)), G(0, 1, nbs=(2, 3)), G(1, 0), G(1, 1)]
PM7 = [G(0, 0, 0, 4), G(1, 0, 0, 4), G(0, 0, 4, 8), G(1, 0, 4, 8), G(0, 1), G(1, 1)]
def BLOCKS(S): return [(p, j) for p in range(2) for j in range(NJ(S)[p])]

def plan(groups, first=False, last=False, final=False, epi=None, b_dma_here=False, b_start=2, no_b2=False, cold=False, reserve=None, pf=False, S=16):
    mf = []; xuse = {}; wuse = {}; accw = {}
    seen = set()
    raw = []
    nxd = 9 if S == 16 else 8
    for g, (ks, p, lo, hi, gnb, gtaps) in enumerate(groups):
        cnt = 0
        JW = (int(os.environ.get("JWE", "1")) if epi else int(os.environ.get("JW", "4"))) if len(gtaps) == 5 else 1
        for pi, j0 in enumerate(range(lo, hi, JW)):
            jj = list(range(j0, min(j0 + JW, hi)))
            nbs = list(gnb) if pi % 2 == 0 else list(gnb)[::-1]
            for ni, nb in enumerate(nbs):
                for j in (jj if ni % 2 == 0 else jj[::-1]):
                    taps = list(gtaps) if cnt % 2 == 0 else list(gtaps)[::-1]
                    cnt += 1
                    for i in taps:
                        zero = first and (p, j, nb) not in seen
                        seen.add((p, j, nb))
                        idx = len(raw)
                        raw.append((g, ks, p, j, nb, i, zero))
                        xuse.setdefault((g, j + i), []).append(idx)
                        wuse.setdefault((ks, i, nb), []).append(idx)
                        accw.setdefault((p, j, nb), []).append(idx)
    NMR = len(raw)
    frs = sorted(xuse.keys(), key=lambda t: min(xuse[t]))
    import random
    best = None
    for LEAD in (40, 30, 24, 18, 14, 10, 8):
        rnd = random.Random(1)
        for attempt in range(3000):
            slot = {}; sfree = {sl: 0 for sl in range(12)}; ok = True
            for (g, q) in frs:
                lu = max(xuse[(g, q)]); fu = min(xuse[(g, q)])
                if g == 0 and q < PRE: sl = q
                else:
                    cand = [x for x in range(12) if sfree[x] <= max(0, fu - LEAD) and not (x < PRE and g == 0 and (0, x) in xuse and (0, x) not in slot)
                            and (final or x >= PRE or lu < NMR - 14 + x)]
                    if not cand: ok = False; break
                    cand.sort(key=lambda x: sfree[x])
                    sl = cand[0] if (attempt == 0 or rnd.random() < 0.6) else rnd.choice(cand)
                slot[(g, q)] = sl; sfree[sl] = lu + 1
            if ok: best = slot; break
        if best: break
    assert best
    slot = best
    for (g, ks, p, j, nb, i, zero) in raw:
        acc = ACCS(p, j, nb)
        sub = 'A' if ks == 0 else 'B'
        mf.append(I("v_mfma_f32_16x16x32_bf16 %s, %s, %s, %s" % (acc, WREG(ks, i, nb), XREG(slot[(g, j + i)]), "0" if zero else acc),
                    needs=[('xr', g, j + i), ('wt', sub, i, nb, 0), ('wt', sub, i, nb, 1)]))
    NM = len(mf)
    gaps = [[] for _ in range(NM + 2)]
    used = [0] * (NM + 2); usedv = [0] * (NM + 2)
    for k_, c_ in (reserve or {}).items(): used[k_] += c_
    m0lock = set()
    def put(k, ins):
        c, v = cost(ins)
        gaps[k].append(ins); used[k] += c; usedv[k] += v
    def fits(k, c, v, cap=12, capv=8):
        return used[k] + c <= max(cap, c) and usedv[k] + v <= max(capv, v)
    def place(k, ins):
        tup = ins if isinstance(ins, tuple) else (ins,)
        tup = tuple(x if isinstance(x, I) else I(x) for x in tup)
        c = sum(cost(x)[0] for x in tup); v = sum(cost(x)[1] for x in tup)
        while not fits(k, c, v): k += 1
        for x in tup: put(k, x)
        return k
    def place_dma(k, pair):
        m, d = pair
        while not (k not in m0lock and k + 1 not in m0lock and fits(k, 4, 0) and fits(k + 1, 4, 4)): k += 1
        put(k, m); put(k + 1, d); m0lock.add(k); m0lock.add(k + 1)
        return k + 1
    slot_free = {}
    prev_k = 0
    for (g, q) in frs:
        sl = slot[(g, q)]
        if g == 0 and q < PRE:
            assert sl == q
        else:
            fu = min(xuse[(g, q)])
            k = place(max(slot_free.get(sl, 0), prev_k, fu - 60), xread(groups[g][0], groups[g][1], q, sl, ('xr', g, q), S))
            assert k < fu - 5, (g, q, k, fu)
            prev_k = k
        slot_free[sl] = max(xuse[(g, q)]) + 1
    if not final:
        bar_gap = max(prev_k + 8, slot_free[0])
        put(bar_gap, I("s_barrier", needs=[('xd', k) for k in range(nxd)] + [('xr',) + t for t in frs]))
        kk = bar_gap + 1
        for a_ in range(4):
            kk = place(kk, "v_xor_b32 v%d, 0x%x, v%d" % (V_XA + a_, SLOT_XOR, V_XA + a_))
        for q in range(PRE):
            kk = place(max(kk, slot_free[q]), xread(0, 0, q, q, ('xr', 'n', q)))
        assert kk <= NM - 3, kk
    def trs(sub, st, start, tr_end, sp_from=None, regions=WORDER, ready=None, check=False):
        n_ = 4 * len(regions)
        sp = max(1, min(TRSP, (tr_end - (sp_from or start)) // n_))
        k = start; done = {}
        for (hf, tap) in regions:
            for b in range(2):
                nb = 2 * hf + b
                for t in range(2):
                    e0 = max(wuse[(st, tap, nb)]) + 1 if sub == 'A2' else 0
                    if ready: e0 = max(e0, ready.get((hf, tap), 0))
                    k = place(max(k, e0), wtr(sub, st, tap, nb, t))
                    if sub != 'A2': assert k < min(wuse[(st, tap, nb)]) - 4, (sub, tap, nb, k, min(wuse[(st, tap, nb)]))
                    done[(hf, tap)] = k
                    k += sp
        assert k - sp < NM - 2
        return done
    def dmas(nsub, prev, done, start, end, maxsp, regions=WORDER):
        at = {}
        n_ = 2 * len(regions)
        dsp = max(2.0, min(float(maxsp), (end - start) / float(n_)))
        i = 0; kl = start - 2; base = start
        for (hf, tap) in regions:
            for dh in range(2):
                tgt = int(base + i * dsp)
                rdy = done.get((hf, tap), -6) + 6
                if rdy > tgt:
                    base = rdy; dsp = max(2.0, min(float(maxsp), (end - rdy) / float(n_ - i))); base -= i * dsp; tgt = rdy
                kl = place_dma(max(tgt, kl + 1), wdma(nsub, prev, tap, dh, hf))
                at[(hf, tap)] = kl
                i += 1
        place(kl + 1, WADV)
        return at
    st1_first = min(min(v) for (ks, i, nb), v in wuse.items() if ks == 1)
    st0_first_free = min(max(v) for (ks, i, nb), v in wuse.items() if ks == 0) + 1
    st0_end = max(max(v) for (ks, i, nb), v in wuse.items() if ks == 0) + 1
    if cold:
        CSP = int(os.environ.get("CSP", "6")); CLAT = int(os.environ.get("CLAT", "70"))
        hf1 = [r for r in WORDER if r[0] == 1]
        aA = dmas('A', None, {}, 1, 1 + 10 * CSP, CSP, hf1)
        r2 = [(0, t) for t in T2]
        fu2 = min(min(wuse[(0, t, nb)]) for t in T2 for nb in (0, 1))
        dA = trs('A', 0, max(2, fu2 - 40), fu2 - 8, regions=r2)
        fu3 = min(min(wuse[(0, t, nb)]) for t in range(5) for nb in (2, 3))
        dA.update(trs('A', 0, max(aA.values()) + 20, fu3 - 6, regions=hf1, ready={r: aA[r] + CLAT for r in hf1}))
        aB = dmas('B', 'A', dA, max(aA.values()) + CSP, 9999, CSP)
        d1 = trs('B', 1, min(aB.values()) + CLAT, st1_first - 6, regions=WORDER, ready={r: aB[r] + CLAT for r in WORDER})
        k = max(max(aB.values()) + 4, d1[WORDER[0]] + 6)
        aA2 = dmas('A2', 'B', d1, k, 470, WSPACE)
        d2 = trs('A2', 0, min(aA2.values()) + CLAT, NM - 40, regions=WORDER, ready={r: aA2[r] + CLAT for r in WORDER})
        dmas('B2', 'A2', d2, max(max(aA2.values()) + 4, d2[WORDER[0]] + 6), NM - 24, WSPACE)
    else:
        if b_dma_here:
            dmas('B', 'A', {}, 1, b_start - 40, WSPACE)
        d1 = trs('B', 1, b_start, st1_first - 6)
    if not final:
        if not cold:
            k = d1[WORDER[0]] + 6
            if last: place(k - 3, WRESET)
            dmas('A2', 'B', d1, k, st0_end - 80, WSPACE)
            d2 = trs('A2', 0, st0_first_free, NM - 12 if no_b2 else NM - 70, st0_end)
            if not no_b2:
                dmas('B2', 'A2', d2, d2[WORDER[0]] + 6, NM - 24, WSPACE)
        k = int(os.environ.get("CX0", "170")) if cold else 7
        if last:
            for s_ in xsrd_tile_ins(): k = place(k, s_)
            k += 2
        xsp = min(XSPACE, (bar_gap - XLAT - k) // nxd)
        for kx in range(nxd):
            k = place_dma(k, xdma(kx)); kl = k
            k += xsp
        k = kl + 1
        for s_ in XDMA_POST: k = place(k, s_)
    if pf and PF:
        if pf == 'disp':
            kq_ = place(270, (I("s_cmp_lt_u32 s%d, s%d" % (S_DW, S_DT)), I("s_cbranch_scc1 L_disp"), I("PFSLOT", ('pf',), 'v')))
            place(kq_ + 1, (I("s_mov_b64 s[96:97], s[94:95]"), I("s_memrealtime s[94:95]")))
        else:
            place(270, I("global_load_dword v44, v47, s[88:89]", ('pf',), 'v'))
    if epi:
        base_gaps = [list(g) for g in gaps]; base_used = list(used); base_usedv = list(usedv)
        done = False
        for num in range(0, 33):
            gaps[:] = [list(g) for g in base_gaps]; used[:] = base_used; usedv[:] = base_usedv
            def extra(k):
                if num <= 16: return 4 if (k * num) % 16 < num else 0
                return 8 if (k * (num - 16)) % 16 < (num - 16) else 4
            k = 0; ok = True
            for (which, p, j) in epi:
                if which == 'own':
                    k = max(k, max(max(accw[(p, j, nb)]) for nb in range(4)) + 9)
                for slt in epi_block(p, j, EPI_TB):
                    for ins in slt:
                        c, v = cost(ins)
                        while k < NM and not (used[k] + c <= 12 + extra(k) and usedv[k] + v <= 8 + extra(k)): k += 1
                        if k >= NM - 3: ok = False; break
                        put(k, ins)
                        ar = acc_reads(ins.t)
                        if which == 'prev' and ar is not None:
                            for nb in range(4):
                                kind, b = ACC(p, j, nb)
                                if kind == ar[0] and b <= ar[1] < b + 4 and (p, j, nb) in accw and k > min(accw[(p, j, nb)]): ok = False
                    if not ok: break
                if not ok: break
            if ok:
                sys.stderr.write("epilogue fill: num=%d ends at gap %d\n" % (num, k)); done = True; break
        assert done
    pos_ = {}
    for k in range(NM + 1):
        for ins in gaps[k]:
            if ins.tag: pos_[ins.tag] = k
    md = min([k - pos_[n] for k in range(NM + 1) for ins in gaps[k] for n in ins.needs if n[0] == 'wd' and n in pos_] + [9999])
    assert md >= 50, md
    seq = []
    assert not gaps[NM + 1]
    for k in range(NM + 1):
        items = [x for x in gaps[k] if x.t.startswith("s_")] + [x for x in gaps[k] if not x.t.startswith("s_")]
        if k < NM: items.append(mf[k])
        tags_here = set(x.tag for x in items if x.tag)
        needs = []
        for x in items:
            for n_ in x.needs:
                assert n_ not in tags_here
                needs.append(n_)
        for idx, x in enumerate(items):
            y = I(x.t, x.tag, x.cls, needs if idx == 0 else [])
            y.gap = k; seq.append(y)
    return seq

def rename_exit(q):
    r = []
    for t in q:
        if t[0] == 'xr': r.append(('xr', 0, t[2]) if t[1] == 'n' else ('old',))
        elif t[0] in ('wt', 'wd') and t[1] in ('A2', 'B2'): r.append((t[0], t[1][0]) + t[2:])
        else: r.append(('old',))
    return r

def simulate(seq, entry, forced=None):
    vq, lq = list(entry[0]), list(entry[1])
    issued = set(entry[2])
    waits = {}; pos = {}
    for i, ins in enumerate(seq):
        vm = lg = None
        for n in ins.needs:
            assert n in issued, ("need not issued", n, ins.t)
            if n in vq:
                c = len(vq) - 1 - vq.index(n); vm = c if vm is None else min(vm, c)
            if n in lq:
                c = len(lq) - 1 - lq.index(n); lg = c if lg is None else min(lg, c)
        g_ = getattr(ins, 'gap', None)
        if g_ is not None:
            if vm is not None:
                old_ = [j for j, t in enumerate(vq) if pos.get(t, -999) <= g_ - VOLD]
                if old_: vm = min(vm, len(vq) - 1 - max(old_))
            if lg is not None:
                old_ = [j for j, t in enumerate(lq) if pos.get(t, -999) <= g_ - LOLD]
                if old_: lg = min(lg, len(lq) - 1 - max(old_))
        if forced and i in forced:
            fv, fl = forced[i]
            if fv is not None: vm = fv if vm is None else min(vm, fv)
            if fl is not None: lg = fl if lg is None else min(lg, fl)
        if vm is not None:
            assert vm <= 63
            if vm < len(vq): vq = vq[len(vq) - vm:] if vm else []
        if lg is not None:
            lg = min(lg, 15)
            if lg < len(lq): lq = lq[len(lq) - lg:] if lg else []
        if vm is not None or lg is not None: waits[i] = (vm, lg)
        if ins.cls == 'v': vq.append(ins.tag)
        if ins.cls == 'l': lq.append(ins.tag)
        if ins.tag:
            issued.add(ins.tag); pos[ins.tag] = getattr(ins, 'gap', -999)
    return waits, (rename_exit(vq), rename_exit(lq), frozenset(t for t in rename_exit(sorted(issued, key=str)) if t != ('old',)))

def merge(w1, w2):
    r = dict(w1)
    for i, (v, l) in w2.items():
        if i in r:
            a, b = r[i]
            v2 = a if v is None else (v if a is None else min(a, v))
            l2 = b if l is None else (l if b is None else min(b, l))
            r[i] = (v2, l2)
        else: r[i] = (v, l)
    return r

def emit(seq, waits, stamps_at=()):
    nm = 0
    for i, ins in enumerate(seq):
        if ins.t.startswith("v_mfma"):
            if nm in stamps_at: stamp()
            nm += 1
        if i in waits:
            v, l = waits[i]
            w = []
            if v is not None: w.append("vmcnt(%d)" % v)
            if l is not None: w.append("lgkmcnt(%d)" % l)
            e("s_waitcnt " + " ".join(w))
        if ins.t == "STAMP": stamp()
        elif ins.t == "PFSLOT":
            lab("L_pf")
            e("global_load_dword v44, v47, s[88:89]")
            lab("L_mid2")
        else: e(ins.t)
    return
def emit_old(seq, waits):
    for i, ins in enumerate(seq):
        if i in waits:
            v, l = waits[i]
            w = []
            if v is not None: w.append("vmcnt(%d)" % v)
            if l is not None: w.append("lgkmcnt(%d)" % l)
            e("s_waitcnt " + " ".join(w))
        e(ins.t)

NE7 = int(os.environ.get("NE7", "9"))
NE7F = int(os.environ.get("NE7F", "10"))
NE7G = {15: int(os.environ.get("NE7G15", "10")), 14: int(os.environ.get("NE7G14", "9"))}
NBIG = int(os.environ.get("NBIG", "160"))

def out_switch():
    e("s_add_u32 s%d, s%d, s%d" % (S_OSRD, S_OPTR, S_NB))
    e("s_addc_u32 s%d, s%d, 0" % (S_OSRD + 1, S_OPTR + 1))
    e("s_add_u32 s%d, s%d, s%d" % (S_OBASE, S_NTB, S_OCOL))
    e("v_mad_i32_i24 v%d, v%d, s%d, v%d" % (V_OOFF, V_M, S_K, V_OOFF))
    e("s_movk_i32 s%d, 100" % S_DC)
    e("s_movk_i32 s%d, 100" % S_DW)
    e("s_mov_b32 s%d, 6" % S_CNT)

def tail(S, ne):
    cm("exposed epilogue")
    e("s_nop 7")
    for (p, j) in BLOCKS(S)[ne:]:
        if os.environ.get("NOPK"):
            for slt in epi_block(p, j, EPI_TB):
                for ins in slt: e(ins.t)
        else:
            for ins in epi_block_pk(p, j, EPI_TB): e(ins)
        e("s_nop 1")
    stamp()
    e("s_waitcnt vmcnt(0) lgkmcnt(0)")
    e("s_endpgm")

def main_kernel():
    K = NAME + "_kernel"
    out.append(".globl " + K); out.append(".p2align 8"); out.append(".type %s,@function" % K)
    lab(K)
    e("s_load_dwordx8 s[%d:%d], s[0:1], 0" % (S_XPTR, S_XPTR + 7))
    if STAMP: e("s_load_dwordx2 s[%d:%d], s[0:1], 32" % (S_WSP, S_WSP + 1))
    e("s_cmp_ge_u32 s2, 256")
    e("s_cbranch_scc1 L_done")
    e("s_and_b32 s%d, s2, 7" % S_T0)
    e("s_lshr_b32 s%d, s2, 3" % (S_T0 + 1))
    e("s_and_b32 s%d, s%d, 3" % (S_NT, S_T0 + 1))
    e("s_lshr_b32 s%d, s%d, 2" % (S_T0 + 1, S_T0 + 1))
    e("s_lshl_b32 s%d, s%d, 3" % (S_T0 + 1, S_T0 + 1))
    e("s_add_u32 s%d, s%d, s%d" % (S_T0, S_T0, S_T0 + 1))
    e("s_cmp_ge_u32 s%d, 32" % S_T0)
    e("s_cselect_b32 s%d, %d, 0" % (S_T0 + 5, BATCHB))
    e("s_and_b32 s%d, s%d, 31" % (S_T0, S_T0))
    e("s_lshl_b32 s%d, s%d, 18" % (S_TB, S_T0))
    e("s_sub_u32 s%d, s%d, 0x2000" % (S_T0 + 2, S_TB))
    e("s_getpc_b64 s[86:87]")
    lab("L_pc")
    e("s_add_u32 s88, s86, L_disp-L_pc")
    e("s_addc_u32 s89, s87, 0")
    e("s_add_u32 s86, s86, L_c0-L_pc")
    e("s_addc_u32 s87, s87, 0")
    e("v_lshlrev_b32 v47, 6, v0")
    e("global_load_dword v44, v47, s[86:87]")
    e("v_lshrrev_b32 v%d, 6, v0" % V_T)
    e("v_and_b32 v%d, 63, v0" % (V_T + 1))
    L = V_T + 1
    e("v_lshrrev_b32 v%d, 2, v%d" % (V_WOFF, L))
    e("v_readfirstlane_b32 s3, v%d" % V_T)
    e("v_lshlrev_b32 v%d, 11, v%d" % (V_WOFF, V_WOFF))
    e("v_and_b32 v%d, 3, v%d" % (V_T + 2, L))
    e("v_lshl_add_u32 v%d, v%d, 4, v%d" % (V_WOFF, V_T + 2, V_WOFF))
    SG = V_T + 2; PI = V_T + 3; C = V_T + 4; MP = V_T + 5; F = V_T + 6; SG0 = V_T + 7
    e("v_lshrrev_b32 v%d, 3, v%d" % (SG0, L))
    e("v_and_b32 v%d, 7, v%d" % (PI, L))
    e("s_lshl_b32 s%d, s%d, 2" % (S_T0, S_NT))
    e("s_add_u32 s%d, s%d, s3" % (S_T0, S_T0))
    e("s_lshl_b32 s%d, s%d, 6" % (S_OCOL, S_T0))
    e("s_mul_i32 s%d, s3, 20480" % S_WL)
    e("s_add_u32 s%d, s%d, %d" % (S_WL, S_WL, WL1 - 20480))
    e("s_cmp_eq_u32 s3, 0")
    e("s_cselect_b32 s%d, %d, s%d" % (S_WL, WL0, S_WL))
    e("s_mov_b32 s%d, %d" % (S_WSRD + 2, WPB))
    e("s_mov_b32 s%d, 0x20000" % (S_WSRD + 3))
    e("s_mov_b32 s%d, 0x20000" % (S_XSRD + 3))
    for tap in range(5):
        for dh in range(2): e("s_mov_b32 s%d, %d" % (S_WC + tap * 2 + dh, tap * 1048576 + dh * 32768))
    e("s_lshl_b32 s%d, s3, 6" % (S_T0 + 3))
    e("s_lshl_b32 s%d, s3, 3" % (S_T0 + 4))
    e("s_add_u32 s%d, s%d, 256" % (S_T0 + 4, S_T0 + 4))
    e("s_lshl_b32 s%d, s3, 13" % S_M0)
    e("s_lshl_b32 s%d, s3, 10" % S_M0H)
    e("s_cmp_lt_u32 s3, 2")
    e("s_mov_b32 s%d, %d" % (S_T0, XSCRATCH - 2048))
    e("s_cselect_b32 s%d, 0x8000, s%d" % (S_T0, S_T0))
    e("s_cselect_b32 s%d, 0x%x, 0" % (S_HX, SLOT_XOR))
    e("s_cselect_b32 s%d, 0, 0x80000000" % S_HEXEC)
    e("s_add_u32 s%d, s%d, s%d" % (S_M0H, S_M0H, S_T0))
    e("s_mov_b32 s%d, %d" % (S_XSRD + 2, BATCHB))
    e("v_mov_b32 v%d, 0" % V_MP)
    e("v_mov_b32 v%d, 0" % (V_MP + 1))
    for k in range(9):
        if k < 8:
            e("v_add_u32 v%d, s%d, v%d" % (SG, S_T0 + 3, SG0))
            e("s_add_u32 s%d, s%d, 8" % (S_T0 + 3, S_T0 + 3))
        else:
            e("v_add_u32 v%d, s%d, v%d" % (SG, S_T0 + 4, SG0))
        e("v_mul_u32_u24 v%d, 241, v%d" % (C, SG))
        e("v_lshrrev_b32 v%d, 12, v%d" % (C, C))
        e("v_mul_u32_u24 v%d, 17, v%d" % (MP, C))
        e("v_sub_u32 v%d, v%d, v%d" % (MP, SG, MP))
        e("v_bfe_u32 v%d, v%d, 1, 3" % (F, MP))
        e("v_xor_b32 v%d, v%d, v%d" % (F, F, PI))
        e("v_lshl_add_u32 v%d, v%d, 4, v%d" % (C, MP, C))
        e("v_lshlrev_b32 v%d, 4, v%d" % (F, F))
        e("v_lshl_add_u32 v%d, v%d, 10, v%d" % (V_DCUR + k, C, F))
        e("v_add_u32 v%d, s%d, v%d" % (V_DCUR + k, S_T0 + 2, V_DCUR + k))
        e("v_lshl_or_b32 v%d, v%d, %d, v%d" % (V_MP + k // 6, MP, 5 * (k % 6), V_MP + k // 6))
    e("v_lshrrev_b32 v%d, 1, v%d" % (C, V_DCUR + 8))
    e("v_or_b32 v%d, s%d, v%d" % (C, S_HEXEC, C))
    e("s_cmp_lt_u32 s3, 2")
    e("s_cselect_b64 vcc, -1, 0")
    e("v_cndmask_b32 v%d, v%d, v%d, vcc" % (V_DCUR + 8, C, V_DCUR + 8))
    e("s_waitcnt lgkmcnt(0)")
    e("s_add_u32 s%d, s%d, s%d" % (S_XSRD, S_XPTR, S_T0 + 5))
    e("s_addc_u32 s%d, s%d, 0" % (S_XSRD + 1, S_XPTR + 1))
    e("s_add_u32 s%d, s%d, s%d" % (S_WSRD, S_XPTR + 2, S_OCOL))
    e("s_addc_u32 s%d, s%d, 0" % (S_WSRD + 1, S_XPTR + 3))
    e("s_mov_b64 s[%d:%d], s[%d:%d]" % (S_WB0, S_WB0 + 1, S_WSRD, S_WSRD + 1))
    e("s_mov_b32 s%d, s22" % S_DSRD)
    e("s_mov_b32 s%d, s23" % (S_DSRD + 1))
    e("s_mov_b32 s%d, s3" % S_WAVE)
    if STAMP:
        e("s_add_u32 s%d, s%d, 0x800000" % (S_SSRD, S_WSP))
        e("s_addc_u32 s%d, s%d, 0" % (S_SSRD + 1, S_WSP + 1))
        e("s_mov_b32 s%d, 0x40000" % (S_SSRD + 2))
        e("s_mov_b32 s%d, 0x20000" % (S_SSRD + 3))
        e("s_lshl_b32 s%d, s2, 9" % S_SOFF)
    stamp()
    pro = []
    def P(x):
        for y in (x if isinstance(x, tuple) else (x,)): pro.append(y if isinstance(y, I) else I(y))
    wd = [wdma('A2', None, tap, dh, hf) for (hf, tap) in WORDER for dh in range(2)]
    def PD(pair): P(pair[0]); P("s_nop 0"); P(pair[1])
    for k in range(9): PD(xdma(k))
    for k in range(10): PD(wd[k])
    for s_ in XDMA_POST: P(s_)
    KQ = V_T + 3; TMP = V_T + 4; TMP2 = V_T + 5; TMP3 = V_T + 6
    M = V_M
    P("v_and_b32 v%d, 15, v%d" % (M, L))
    P("v_lshrrev_b32 v%d, 4, v%d" % (KQ, L))
    P("v_lshrrev_b32 v%d, 1, v%d" % (TMP, KQ))
    P("v_lshlrev_b32 v%d, 11, v%d" % (TMP, TMP))
    P("v_and_b32 v%d, 1, v%d" % (TMP2, KQ))
    P("v_lshl_add_u32 v%d, v%d, 9, v%d" % (TMP, TMP2, TMP))
    P("v_lshl_add_u32 v%d, v%d, 4, v%d" % (TMP, M, TMP))
    P("v_add_u32 v%d, s%d, v%d" % (V_WTR, S_WL, TMP))
    P("v_lshlrev_b32 v%d, 14, v%d" % (V_OOFF, M))
    P("v_lshl_add_u32 v%d, v%d, 4, v%d" % (V_OOFF, KQ, V_OOFF))
    for s in range(2):
        for ks in range(2):
            dst = V_XA + s * 2 + ks
            P("v_add_u32 v%d, %d, v%d" % (TMP, s, M))
            P("v_bfe_u32 v%d, v%d, 1, 3" % (TMP2, TMP))
            P("v_add_u32 v%d, %d, v%d" % (TMP3, 4 * ks, KQ))
            P("v_xor_b32 v%d, v%d, v%d" % (TMP2, TMP2, TMP3))
            P("v_lshlrev_b32 v%d, 4, v%d" % (TMP2, TMP2))
            P("v_lshl_add_u32 v%d, v%d, 7, v%d" % (dst, TMP, TMP2))
    P("s_mov_b32 s%d, 0x4038aa3b" % S_C1)
    P("s_mov_b32 s%d, 0xbfb8aa3b" % S_C2)
    P("s_mov_b32 s%d, 0x41f00000" % S_C3)
    P("s_mov_b32 s%d, 0x20000" % (S_OSRD + 3))
    P("s_mov_b32 s%d, %d" % (S_OSRD + 2, BATCHB))
    P("s_movk_i32 s%d, 256" % (S_DSRD + 2))
    P("s_mov_b32 s%d, 0x20000" % (S_DSRD + 3))
    P("s_add_u32 s%d, s%d, s%d" % (S_OSRD, S_OPTR, S_T0 + 5))
    P("s_addc_u32 s%d, s%d, 0" % (S_OSRD + 1, S_OPTR + 1))
    P("s_add_u32 s%d, s%d, s%d" % (S_OBASE, S_TB, S_OCOL))
    P("s_mov_b32 s%d, 6" % S_DC)
    P("s_mov_b32 s%d, 7" % S_TRY)
    P("s_cmp_eq_u32 s%d, 0" % S_NT)
    P("s_cselect_b32 s%d, 5, 4" % S_DT)
    P("s_mov_b64 s[94:95], 0")
    P("s_cmp_eq_u32 s%d, 0" % S_WAVE)
    P("s_cselect_b32 s%d, 6, 64" % S_DW)
    P("s_getreg_b32 s%d, hwreg(HW_REG_XCC_ID, 0, 3)" % S_XCC)
    P("s_mov_b32 s%d, 6" % S_CNT)
    P("v_mov_b32 v%d, %d" % (V_TMP, RANK_LDS))
    P(I("s_barrier", needs=[('xd', k) for k in range(9)]))
    for q in range(PRE): P(xread(0, 0, q, q, ('xr', 'n', q)))
    for tap in T1:
        for nb in range(2):
            for t in range(2): P(wtr('A2', 0, tap, nb, t))
    w, st_pro = simulate(pro, ([('old',)], [], frozenset()))
    emit(pro, w)
    stamp()
    B0P = int(os.environ.get('B0P', '40'))
    prev = [('prev',) + b for b in BLOCKS(16)[NE7:]]
    makers = {
        'c0': lambda r: plan(COLD, first=True, cold=True, reserve=r),
        'm16': lambda r: plan(NAT(16), reserve=r, pf='disp'),
        'c7': lambda r: plan(PM7, last=True, epi=[('own',) + b for b in BLOCKS(16)[:NE7]], reserve=r, pf=True),
        'p16': lambda r: plan(REO2(16), first=True, b_start=B0P, epi=prev, reserve=r),
        'f16': lambda r: plan(PM(16), final=True, epi=[('own',) + b for b in BLOCKS(16)[:NE7F]], reserve=r),
    }
    succ = {'c0': ['m16'], 'm16': ['m16', 'c7', 'f16'], 'c7': ['p16'], 'p16': ['m16'], 'f16': []}
    for S_ in SMALL:
        makers['p%d' % S_] = (lambda S_: lambda r: plan(REO2(S_), first=True, b_start=B0P, epi=prev, reserve=r, S=S_))(S_)
        makers['m%d' % S_] = (lambda S_: lambda r: plan(NAT(S_), reserve=r, pf=True, S=S_))(S_)
        makers['f%d' % S_] = (lambda S_: lambda r: plan(PM(S_), final=True, epi=[('own',) + b for b in BLOCKS(S_)[:NE7G[S_]]], reserve=r, S=S_))(S_)
        succ['c7'].append('p%d' % S_); succ['p%d' % S_] = ['m%d' % S_]; succ['m%d' % S_] = ['m%d' % S_, 'f%d' % S_]; succ['f%d' % S_] = []
    res = {n: {} for n in makers}
    for outer in range(8):
        sq = {n: makers[n](res[n]) for n in makers}
        ent = {n: [] for n in makers}; ent['c0'] = [st_pro]
        wt = {n: {} for n in makers}
        for it in range(12):
            changed = False
            for n in makers:
                nw = dict(wt[n])
                for en in ent[n]: nw = merge(nw, simulate(sq[n], en, wt[n])[0])
                if nw != wt[n]: wt[n] = nw; changed = True
                for en in ent[n]:
                    ex = simulate(sq[n], en, wt[n])[1]
                    for m_ in succ[n]:
                        if ex not in ent[m_]: ent[m_].append(ex); changed = True
            if not changed: break
        assert not changed
        ch2 = False; rep = []
        for n in makers:
            tot = {}
            for i, ins in enumerate(sq[n]):
                if not ins.t.startswith("v_mfma"): tot[ins.gap] = tot.get(ins.gap, 0) + cost(ins)[0]
                if i in wt[n]: tot[ins.gap] = tot.get(ins.gap, 0) + 4
            rep.append((n, sum(max(0, v - 12) for v in tot.values()), len(wt[n])))
            for i in wt[n]:
                g_ = sq[n][i].gap
                if tot[g_] > 12 and g_ not in res[n]:
                    res[n][g_] = 4; ch2 = True
        sys.stderr.write("outer %d %s\n" % (outer, rep))
        if not ch2: break
    lab("L_c0")
    cm("chunk 0 (tile 0)")
    emit(sq['c0'], wt['c0'])
    out.append(".p2align 6")
    lab("L_mid")
    if os.environ.get("LOOPST"): stamp()
    emit(sq['m16'], wt['m16'])
    e("s_sub_u32 s%d, s%d, 1" % (S_DC, S_DC))
    e("s_sub_u32 s%d, s%d, 1" % (S_DW, S_DW))
    e("s_sub_u32 s%d, s%d, 1" % (S_CNT, S_CNT))
    e("s_cmp_lg_u32 s%d, 0" % S_CNT)
    e("s_cbranch_scc1 L_mid")
    stamp()
    e("s_cmp_lg_u32 s%d, 0" % S_DC)
    e("s_cbranch_scc1 L_f16")
    e("s_branch L_c7")
    lab("L_disp")
    cm("wave 0 only: time one chunk, publish per-XCC time, claim the second tile from the matching end of this n-tile's list")
    t = S_T0
    e("s_cmp_eq_u32 s%d, 4" % S_DW)
    e("s_cbranch_scc0 L_d3")
    e("s_lshl_b32 s%d, s%d, 2" % (t + 1, S_XCC))
    e("s_sub_u32 s%d, s94, s96" % t)
    e("s_min_u32 s%d, s%d, 4095" % (t, t))
    e("s_add_u32 s%d, s%d, 0x100000" % (t, t))
    e("v_mov_b32 v%d, s%d" % (V_RANK, t))
    e("s_mov_b64 exec, 1")
    e("buffer_atomic_add v%d, off, s[%d:%d], s%d offset:128" % (V_RANK, S_DSRD, S_DSRD + 3, t + 1))
    e("s_mov_b64 exec, -1")
    e("s_branch L_mid2")
    lab("L_d3")
    e("s_cmp_eq_u32 s%d, 3" % S_DW)
    e("s_cbranch_scc0 L_d2")
    e("v_lshlrev_b32 v%d, 2, v%d" % (V_T, V_M))
    e("s_mov_b64 exec, 0xff")
    e("buffer_load_dword v%d, v%d, s[%d:%d], 0 offen offset:128 sc0 sc1" % (V_RANK, V_T, S_DSRD, S_DSRD + 3))
    e("s_mov_b64 exec, -1")
    e("s_branch L_mid2")
    lab("L_d2")
    e("s_cmp_eq_u32 s%d, 2" % S_DW)
    e("s_cbranch_scc0 L_d1")
    e("s_waitcnt vmcnt(40)")
    e("v_readlane_b32 s%d, v%d, s%d" % (t, V_RANK, S_XCC))
    e("v_lshrrev_b32 v%d, 20, v%d" % (V_T, V_RANK))
    e("v_and_b32 v%d, 0xfffff, v%d" % (V_T + 1, V_RANK))
    e("s_lshr_b32 s%d, s%d, 20" % (t + 1, t))
    e("s_and_b32 s%d, s%d, 0xfffff" % (t, t))
    e("v_mul_u32_u24 v%d, s%d, v%d" % (V_T + 1, t + 1, V_T + 1))
    e("v_mul_u32_u24 v%d, s%d, v%d" % (V_T, t, V_T))
    e("s_mov_b64 exec, 0xff")
    e("v_cmp_gt_u32 vcc, v%d, v%d" % (V_T + 1, V_T))
    e("v_cmp_eq_u32 s[%d:%d], v%d, v%d" % (t + 2, t + 3, V_T + 1, V_T))
    e("s_mov_b64 exec, 1")
    e("v_mov_b32 v%d, 1" % V_RANK)
    e("s_bfm_b32 s%d, s%d, 0" % (t + 1, S_XCC))
    e("s_nop 2")
    e("s_and_b32 s%d, s%d, s%d" % (t + 2, t + 2, t + 1))
    e("s_or_b32 s%d, s%d, vcc_lo" % (t + 2, t + 2))
    e("s_bcnt1_i32_b32 s%d, s%d" % (S_PREF, t + 2))
    e("s_lshl_b32 s%d, s%d, 5" % (t + 1, S_NT))
    e("s_lshl_b32 s%d, s%d, 2" % (t, S_PREF))
    e("s_add_u32 s%d, s%d, s%d" % (t + 1, t + 1, t))
    e("buffer_atomic_add v%d, off, s[%d:%d], s%d sc0" % (V_RANK, S_DSRD, S_DSRD + 3, t + 1))
    e("s_mov_b64 exec, -1")
    e("s_branch L_mid2")
    lab("L_d1")
    e("s_waitcnt vmcnt(40)")
    lab("L_d1b")
    e("v_readfirstlane_b32 s%d, v%d" % (t, V_RANK))
    e("s_nop 3")
    e("s_cmp_lt_u32 s%d, 8" % t)
    e("s_cbranch_scc1 L_d1c")
    cm("region full (unusual placement or snapshot): take the next region that still has a free slot")
    e("s_add_u32 s%d, s%d, 1" % (S_PREF, S_PREF))
    e("s_and_b32 s%d, s%d, 7" % (S_PREF, S_PREF))
    e("s_lshl_b32 s%d, s%d, 5" % (t + 1, S_NT))
    e("s_lshl_b32 s%d, s%d, 2" % (t, S_PREF))
    e("s_add_u32 s%d, s%d, s%d" % (t + 1, t + 1, t))
    e("v_mov_b32 v%d, 1" % V_RANK)
    e("s_mov_b64 exec, 1")
    e("buffer_atomic_add v%d, off, s[%d:%d], s%d sc0" % (V_RANK, S_DSRD, S_DSRD + 3, t + 1))
    e("s_mov_b64 exec, -1")
    e("s_sub_u32 s%d, s%d, 1" % (S_TRY, S_TRY))
    e("s_waitcnt vmcnt(0)")
    e("s_cmp_lg_u32 s%d, 0" % S_TRY)
    e("s_cbranch_scc1 L_d1b")
    e("v_readfirstlane_b32 s%d, v%d" % (t, V_RANK))
    e("s_nop 3")
    e("s_and_b32 s%d, s%d, 7" % (t, t))
    lab("L_d1c")
    e("s_lshl_b32 s%d, s%d, 3" % (t + 1, S_PREF))
    e("s_add_u32 s%d, s%d, s%d" % (t, t, t + 1))
    e("v_mov_b32 v%d, s%d" % (V_RANK, t))
    e("ds_write_b32 v%d, v%d" % (V_TMP, V_RANK))
    e("s_branch L_pf")
    lab("L_c7")
    cm("decode the claimed second tile")
    r = S_T0
    e("ds_read_b32 v%d, v%d" % (V_RANK, V_TMP))
    e("s_waitcnt lgkmcnt(0)")
    e("v_readfirstlane_b32 s%d, v%d" % (r, V_RANK))
    e("s_nop 3")
    e("s_lshr_b32 s%d, s%d, 3" % (r + 1, r))
    e("s_and_b32 s%d, s%d, 3" % (r + 2, r))
    e("s_bitcmp1_b32 s%d, 2" % r)
    e("s_cselect_b32 s%d, %d, 0" % (S_NB, BATCHB))
    classes = []
    base = 8192
    for k_, S_ in enumerate(PATTERN):
        if not classes or classes[-1][0] != S_: classes.append((S_, k_, base))
        base += 64 * S_
    S0, k0, b0 = classes[0]
    e("s_movk_i32 s%d, %d" % (S_SMALL, S0))
    e("s_mov_b32 s%d, %d" % (r + 3, b0 - 64 * S0 * k0))
    for (S_, k_, b_) in classes[1:]:
        e("s_cmp_ge_u32 s%d, %d" % (r + 1, k_))
        e("s_cselect_b32 s%d, %d, s%d" % (S_SMALL, S_, S_SMALL))
        e("s_cselect_b32 s%d, %d, s%d" % (r + 3, b_ - 64 * S_ * k_, r + 3))
    e("s_lshl_b32 s%d, s%d, 2" % (r + 1, r + 1))
    e("s_add_u32 s%d, s%d, s%d" % (r + 1, r + 1, r + 2))
    e("s_mul_i32 s%d, s%d, s%d" % (r + 1, r + 1, S_SMALL))
    e("s_lshl_b32 s%d, s%d, 4" % (r + 1, r + 1))
    e("s_add_u32 s%d, s%d, s%d" % (r + 1, r + 1, r + 3))
    e("s_lshl_b32 s%d, s%d, 10" % (S_NTB, r + 1))
    e("s_sub_u32 s%d, s%d, s%d" % (S_DELTA, S_NTB, S_TB))
    e("s_mov_b32 s%d, L_p16-L_c0" % (r + 1))
    for S_ in SMALL:
        e("s_cmp_eq_u32 s%d, %d" % (S_SMALL, S_))
        e("s_cselect_b32 s%d, L_p%d-L_c0, s%d" % (r + 1, S_, r + 1))
    e("s_add_u32 s88, s86, s%d" % (r + 1))
    e("s_addc_u32 s89, s87, 0")
    e("s_sub_u32 s%d, s%d, 16" % (S_K, S_SMALL))
    e("s_lshl_b32 s%d, s%d, 10" % (S_K, S_K))
    cm("chunk 7 (tile 0)")
    emit(sq['c7'], wt['c7'])
    stamp()
    e("v_min_u32 v47, L_done-L_f%d-4, v47" % SMALL[-1])
    for S_ in SMALL:
        e("s_cmp_eq_u32 s%d, %d" % (S_SMALL, S_))
        e("s_cbranch_scc1 L_p%d" % S_)
    lab("L_p16")
    cm("chunk 0 (tile 1, 256 rows)")
    emit(sq['p16'], wt['p16'])
    out_switch()
    e("s_add_u32 s88, s86, L_f16-L_c0")
    e("s_addc_u32 s89, s87, 0")
    stamp()
    e("s_branch L_mid")
    lab("L_f16")
    cm("chunk 7 (tile 1, 256 rows)")
    emit(sq['f16'], wt['f16'])
    stamp()
    tail(16, NE7F)
    for S_ in SMALL:
        lab("L_p%d" % S_)
        cm("chunk 0 (tile 1, %d rows)" % (16 * S_))
        emit(sq['p%d' % S_], wt['p%d' % S_])
        out_switch()
        e("s_add_u32 s88, s86, L_f%d-L_c0" % S_)
        e("s_addc_u32 s89, s87, 0")
        stamp()
        out.append(".p2align 6")
        lab("L_mid%d" % S_)
        if os.environ.get("LOOPST"): stamp()
        emit(sq['m%d' % S_], wt['m%d' % S_])
        e("s_sub_u32 s%d, s%d, 1" % (S_CNT, S_CNT))
        e("s_cmp_lg_u32 s%d, 0" % S_CNT)
        e("s_cbranch_scc1 L_mid%d" % S_)
        stamp()
        lab("L_f%d" % S_)
        cm("chunk 7 (tile 1, %d rows)" % (16 * S_))
        emit(sq['f%d' % S_], wt['f%d' % S_])
        stamp()
        tail(S_, NE7G[S_])
    lab("L_done")
    e("s_endpgm")

hdr = open("cdna_kernels/%s.s.ref" % NAME).read().split("\n")
for l in hdr:
    if l.startswith(";") and "@launch" not in l and "Override" not in l and "grid=ceil" not in l:
        out.append(l)
out.append("; @launch grid=(256,1,1) block=(256,1,1) lds=%d" % LDS_BYTES)
out.append('.amdgcn_target "amdgcn-amd-amdhsa--gfx950"')
out.append(".text")
main_kernel()
out.append('.section .rodata,"a"')
out.append(".p2align 6")
out.append(".amdhsa_kernel %s_kernel" % NAME)
out += ["  .amdhsa_next_free_vgpr 512", "  .amdhsa_next_free_sgpr 100", "  .amdhsa_accum_offset 256",
        "  .amdhsa_group_segment_fixed_size 0", "  .amdhsa_kernarg_size 40", "  .amdhsa_user_sgpr_count 2",
        "  .amdhsa_user_sgpr_kernarg_segment_ptr 1", "  .amdhsa_system_sgpr_workgroup_id_x 1", ".end_amdhsa_kernel"]
dst = sys.argv[1] if len(sys.argv) > 1 else "cdna_kernels/%s.s" % NAME
open(dst, "w").write("\n".join(out) + "\n")
print("wrote", dst, len(out), "lines")
```

```python
import sys, os, re, copy

NAME = "standalone__autoregressive_conv_wavernn__speech"
T = 16000
BATCHB = T * 1024
WPB = 5 * 512 * 1024 * 2
SLOT_XOR = 0x10000
CLS = 17 * 128
WL0 = 34816
WL1 = 0x10000 + 34816
LDS_BYTES = WL1 + 3 * 20480
STAMP = os.environ.get("STAMP") is not None
MAPPING = int(os.environ.get("MAPPING", "0"))
CAP = int(os.environ.get("CAP", "8"))
WSPACE = int(os.environ.get("WSPACE", "13"))
XSPACE = int(os.environ.get("XSPACE", "36"))
XLAT = int(os.environ.get("XLAT", "150"))
TRSP = int(os.environ.get("TRSP", "3"))
VOLD = int(os.environ.get("VOLD", "120"))
LOLD = int(os.environ.get("LOLD", "12"))
PF = os.environ.get("NOPF") is None
XNT = "" if os.environ.get("NOXNT") else " nt"

out = []
def e(s): out.append(" " + s)
def lab(s): out.append(s + ":")
def cm(s): out.append("    ; " + s)

def WREGN(st, tap, nb): return st * 80 + (tap * 4 + nb) * 4
def WREG(st, tap, nb):
    b = WREGN(st, tap, nb); return "a[%d:%d]" % (b, b + 3)
def XREG(q):
    b = 160 + q * 4; return "a[%d:%d]" % (b, b + 3)
NVACC = 52
def ACC(p, j, nb):
    idx = (p * 8 + j) * 4 + nb
    if idx < NVACC: return ('v', 48 + idx * 4)
    return ('a', 208 + (idx - NVACC) * 4)
def ACCS(p, j, nb):
    k, b = ACC(p, j, nb); return "%s[%d:%d]" % (k, b, b + 3)

V_XA = 1; V_WOFF = 5; V_OOFF = 6; V_DCUR = 7
V_T = 16
V_WTR = 46
S_XSRD = 4; S_WSRD = 8; S_OSRD = 12
S_XPTR = 16; S_OPTR = 20
S_WAVE = 22; S_NT = 24; S_DC = 25
S_DSRD = 64; S_NB = 68; S_NTB = 69; S_NOCOL = 70; S_K = 71; S_SMALL = 72; S_DELTA = 73
S_DT = 28; S_TRY = 70; S_DW = 23; S_PREF = 74; S_XCC = 75

V_MP = 36; V_TMP = 38; V_M = 39; V_RANK = 45
RANK_LDS = 57344
S_M0 = 26; S_M0H = 27; S_WS = 28; S_WL = 29; S_CNT = 30
S_HEXEC = 32
S_T0 = 34
S_OBASE = 40; S_TILE = 41; S_C1 = 42; S_C2 = 43; S_TB = 44; S_OCOL = 45; S_ST = 46
S_SSRD = 48; S_SOFF = 52; S_WSP = 60
S_C3 = 47; S_HX = 31; S_WB0 = 62; S_WC = 76
XSCRATCH = 55296

_stn = [0]
NOSTAMP = [False]
def stamp():
    if not STAMP or NOSTAMP[0]: return
    _stn[0] += 1
    e("s_memtime s[56:57]"); e("s_memrealtime s[58:59]"); e("s_waitcnt lgkmcnt(0)")
    e("s_cmp_lg_u32 s%d, 0" % S_WAVE)
    e("s_cbranch_scc1 L_st%d" % _stn[0])
    for k in range(4): e("v_mov_b32 v%d, s%d" % (40 + k, 56 + k))
    e("s_mov_b64 exec, 1")
    e("buffer_store_dwordx4 v[40:43], off, s[%d:%d], s%d" % (S_SSRD, S_SSRD + 3, S_SOFF))
    e("s_mov_b64 exec, -1"); e("s_nop 1")
    lab("L_st%d" % _stn[0])
    e("s_add_u32 s%d, s%d, 16" % (S_SOFF, S_SOFF))

PRE = 6

class I:
    def __init__(self, t, tag=None, cls=None, needs=()):
        self.t = t; self.tag = tag; self.cls = cls; self.needs = list(needs)

MEMC = 4
def cost(ins):
    op = ins.t.split()[0]
    if op in ("v_exp_f32", "v_rcp_f32"): return (8, 8)
    if op.startswith("s_"): return (4, 0)
    return (4, 4)

def xread(ks, p, q, sl, tag, S=16):
    r = p + 2 * q
    s = 1 if r >= S else 0
    c = r - S * s
    return I("ds_read_b128 %s, v%d offset:%d" % (XREG(sl), V_XA + s * 2 + ks, c * CLS), tag, 'l')

def xsrd_tile_ins():
    ins = []
    ins.append(("s_add_u32 s%d, s%d, s%d" % (S_XSRD, S_XPTR, S_NB), "s_addc_u32 s%d, s%d, 0" % (S_XSRD + 1, S_XPTR + 1)))
    for k in range(9):
        ins.append(("v_bfe_u32 v%d, v%d, %d, 5" % (V_TMP, V_MP + k // 6, 5 * (k % 6)),
                    "v_mad_i32_i24 v%d, v%d, s%d, v%d" % (V_DCUR + k, V_TMP, S_K, V_DCUR + k)))
        ins.append(("v_add_u32 v%d, s%d, v%d" % (V_DCUR + k, S_DELTA, V_DCUR + k),))
    return ins

def xdma(k):
    ld = "buffer_load_dwordx4 v%d, s[%d:%d], 0 offen%s lds" % (V_DCUR + k, S_XSRD, S_XSRD + 3, XNT)
    m = ("s_add_u32 m0, s%d, %d" % (S_M0, k * 1024)) if k < 8 else ("s_mov_b32 m0, s%d" % S_M0H)
    return (I(m), I(ld, ('xd', k), 'v'))
XDMA_POST = [("s_add_u32 s%d, s%d, 128" % (S_XSRD, S_XSRD), "s_addc_u32 s%d, s%d, 0" % (S_XSRD + 1, S_XSRD + 1)),
             ("s_xor_b32 s%d, s%d, 0x%x" % (S_M0, S_M0, SLOT_XOR),),
             ("s_xor_b32 s%d, s%d, s%d" % (S_M0H, S_M0H, S_HX),)]

def wdma(sub, prev, tap, dh, hf):
    needs = [('wt', prev, tap, 2 * hf + b, t) for b in range(2) for t in range(2)] if prev else []
    return (I("s_add_u32 m0, s%d, %d" % (S_WL, tap * 4096 + dh * 2048)),
            I("buffer_load_dwordx4 v%d, s[%d:%d], s%d offen offset:%d lds" % (V_WOFF, S_WSRD, S_WSRD + 3, S_WC + tap * 2 + dh, hf * 1024),
              ('wd', sub, tap, dh, hf), 'v', needs))
def wtr(sub, st, tap, nb, t):
    b = WREGN(st, tap, nb) + 2 * t
    hf = nb >> 1
    return I("ds_read_b64_tr_b16 a[%d:%d], v%d offset:%d" % (b, b + 1, V_WTR, tap * 4096 + hf * 1024 + t * 256 + (nb & 1) * 8),
             ('wt', sub, tap, nb, t), 'l', [('wd', sub, tap, dh, hf) for dh in range(2)])
WADV = ("s_add_u32 s%d, s%d, 0x10000" % (S_WSRD, S_WSRD), "s_addc_u32 s%d, s%d, 0" % (S_WSRD + 1, S_WSRD + 1))
WRESET = ("s_mov_b32 s%d, s%d" % (S_WSRD, S_WB0), "s_mov_b32 s%d, s%d" % (S_WSRD + 1, S_WB0 + 1))

def epi_block(p, j, tb):
    sl = []
    regs = {}
    for nb in range(4):
        k, b = ACC(p, j, nb)
        for r in range(4): regs[(nb, r)] = (k, b + r)
    PK = tb
    for h in range(2):
        E = [(tb + 4 if h == 0 else 32) + k for k in range(4)]
        G = [(tb + 8 if h == 0 else 40) + k for k in range(4)]
        Dn = [tb + 12 + k for k in range(4)]
        src = {}; rd = []
        for k in range(4):
            kind, r = regs[(h, k)]
            if kind == 'a':
                rd.append("v_accvgpr_read_b32 v%d, a%d" % (E[k], r)); r = E[k]
            src[('e', k)] = r
            kind, r = regs[(2 + h, k)]
            if kind == 'a':
                rd.append("v_accvgpr_read_b32 v%d, a%d" % (G[k], r)); r = G[k]
            src[('g', k)] = r
        for i in range(0, len(rd), 2): sl.append(tuple(rd[i:i + 2]))
        mulE = ["v_mul_f32 v%d, s%d, v%d" % (E[k], S_C1, src[('e', k)]) for k in range(4)]
        mulG = ["v_mul_f32 v%d, s%d, v%d" % (G[k], S_C2, src[('g', k)]) for k in range(4)]
        mn = ["v_min_f32 v%d, s%d, v%d" % (E[k], S_C3, E[k]) for k in range(4)]
        eG = ["v_exp_f32 v%d, v%d" % (G[k], G[k]) for k in range(4)]
        eE = ["v_exp_f32 v%d, v%d" % (E[k], E[k]) for k in range(4)]
        aD = ["v_add_f32 v%d, 1.0, v%d" % (Dn[k], E[k]) for k in range(4)]
        den = ["v_fmac_f32 v%d, v%d, v%d" % (Dn[k], Dn[k], G[k]) for k in range(4)]
        rc = ["v_rcp_f32 v%d, v%d" % (Dn[k], Dn[k]) for k in range(4)]
        fin = ["v_fma_f32 v%d, v%d, v%d, -v%d" % (E[k], E[k], Dn[k], Dn[k]) for k in range(4)]
        cv = ["v_cvt_pk_bf16_f32 v%d, v%d, v%d" % (PK + 2 * h + k, E[2 * k], E[2 * k + 1]) for k in range(2)]
        sl += [(mulE[0], mulE[1]), (mulE[2], mulE[3]), (mn[0], mn[1]), (mn[2], mn[3]), (eE[0],), (mulG[0], mulG[1]), (eE[1],),
               (mulG[2], mulG[3]), (eE[2],), (eE[3],), (eG[0],), (aD[0], aD[1]), (eG[1],), (aD[2], aD[3]),
               (eG[2],), (eG[3],), (den[0], den[1]), (den[2], den[3]), (rc[0],), (rc[1],), (rc[2],), (rc[3],),
               (fin[0], fin[1]), (fin[2], fin[3]), (cv[0], cv[1])]
    res = [[I(x) for x in s] for s in sl]
    res.append([I("s_add_u32 s%d, s%d, %d" % (S_ST, S_OBASE, (p + 2 * j) * 1024)),
                I("buffer_store_dwordx4 v[%d:%d], v%d, s[%d:%d], s%d offen" % (PK, PK + 3, V_OOFF, S_OSRD, S_OSRD + 3, S_ST), ('st', p, j), 'v')])
    return res
def epi_block_pk(p, j, tb):
    ins = []
    PK = tb
    for h in range(2):
        E = tb + 4; G = tb + 8; Dn = tb + 12
        srcs = []
        for (nb, dst) in ((h, E), (2 + h, G)):
            k, b = ACC(p, j, nb)
            if k == 'a':
                for r in range(4): ins.append("v_accvgpr_read_b32 v%d, a%d" % (dst + r, b + r))
                b = dst
            srcs.append(b)
        pr = lambda b: "v[%d:%d]" % (b, b + 1)
        for u in (0, 2): ins.append("v_pk_mul_f32 %s, %s, s[%d:%d] op_sel_hi:[1,0]" % (pr(E + u), pr(srcs[0] + u), S_C1, S_C1 + 1))
        for u in (0, 2): ins.append("v_pk_mul_f32 %s, %s, s[%d:%d] op_sel:[0,1] op_sel_hi:[1,1]" % (pr(G + u), pr(srcs[1] + u), S_C1, S_C1 + 1))
        for k in range(4): ins.append("v_min_f32 v%d, s%d, v%d" % (E + k, S_C3, E + k))
        for k in range(4): ins.append("v_exp_f32 v%d, v%d" % (G + k, G + k))
        for k in range(4): ins.append("v_exp_f32 v%d, v%d" % (E + k, E + k))
        for u in (0, 2): ins.append("v_pk_add_f32 %s, %s, 1.0 op_sel_hi:[1,0]" % (pr(Dn + u), pr(E + u)))
        for u in (0, 2): ins.append("v_pk_fma_f32 %s, %s, %s, %s" % (pr(Dn + u), pr(Dn + u), pr(G + u), pr(Dn + u)))
        for k in range(4): ins.append("v_rcp_f32 v%d, v%d" % (Dn + k, Dn + k))
        for u in (0, 2): ins.append("v_pk_fma_f32 %s, %s, %s, %s neg_lo:[0,0,1] neg_hi:[0,0,1]" % (pr(E + u), pr(E + u), pr(Dn + u), pr(Dn + u)))
        for k in range(2): ins.append("v_cvt_pk_bf16_f32 v%d, v%d, v%d" % (PK + 2 * h + k, E + 2 * k, E + 2 * k + 1))
    ins.append("s_add_u32 s%d, s%d, %d" % (S_ST, S_OBASE, (p + 2 * j) * 1024))
    ins.append("buffer_store_dwordx4 v[%d:%d], v%d, s[%d:%d], s%d offen" % (PK, PK + 3, V_OOFF, S_OSRD, S_OSRD + 3, S_ST))
    return ins
EPI_TB = V_T

def rw_sets(unit):
    R = set(); Wr = set()
    for ins in unit:
        op, _, rest = ins.t.partition(' ')
        toks = [x.strip().lstrip('-') for x in rest.split(',')]
        def regs(tok):
            tok = tok.split(' ')[0]
            m = re.match(r"v\[(\d+):(\d+)\]$", tok)
            if m: return set(range(int(m.group(1)), int(m.group(2)) + 1))
            m = re.match(r"v(\d+)$", tok)
            return {int(m.group(1))} if m else set()
        if op.startswith("buffer_store"):
            for t_ in toks: R |= regs(t_)
            R.add('st'); Wr.add('st')
        elif op.startswith("v_"):
            Wr |= regs(toks[0])
            for t_ in toks[1:]: R |= regs(t_)
            if op == "v_fmac_f32": R |= regs(toks[0])
    return R, Wr

def acc_reads(t):
    m = re.match(r"v_accvgpr_read_b32 v\d+, a(\d+)", t)
    if m: return ('a', int(m.group(1)))
    m = re.match(r"v_mul_f32 v\d+, s\d+, v(\d+)", t)
    if m and int(m.group(1)) >= 48: return ('v', int(m.group(1)))
    return None

WORDER = [(hf, tap) for hf in range(2) for tap in range(5)]

ALLNB = (0, 1, 2, 3); ALLT = (0, 1, 2, 3, 4)
def G(ks, p, lo=0, hi=8, nbs=ALLNB, taps=ALLT): return (ks, p, lo, hi, nbs, taps)
def NJ(S): return ((S + 1) // 2, S // 2)
def NAT(S): return [G(ks, p, 0, NJ(S)[p]) for ks in range(2) for p in range(2)]
def PM(S): return [G(ks, p, lo, hi) for p in range(2) for (lo, hi) in ((0, 4), (4, NJ(S)[p])) for ks in range(2)]
def REO2(S): return [G(0, 0, 0, NJ(S)[0]), G(1, 0, 0, 4), G(0, 1, 0, NJ(S)[1]), G(1, 0, 4, NJ(S)[0]), G(1, 1, 0, NJ(S)[1])]
PATTERN = [int(c) for c in os.environ.get("PAT", "14,15,15,15,15,16,16,16").split(",")]
assert sum(PATTERN) * 64 == 7808 and len(PATTERN) == 8 and sorted(PATTERN) == PATTERN
SMALL = sorted(set(PATTERN) - {16}, reverse=True)
T1 = tuple(range(int(os.environ.get("CT1", "2"))))
T2 = tuple(range(len(T1), 5))
COLD = [G(0, 0, nbs=(0, 1), taps=T1), G(0, 1, nbs=(0, 1), taps=T1), G(0, 0, nbs=(0, 1), taps=T2), G(0, 1, nbs=(0, 1), taps=T2),
        G(0, 0, nbs=(2, 3)), G(0, 1, nbs=(2, 3)), G(1, 0), G(1, 1)]
PM7 = [G(0, 0, 0, 4), G(1, 0, 0, 4), G(0, 0, 4, 8), G(1, 0, 4, 8), G(0, 1), G(1, 1)]
def BLOCKS(S): return [(p, j) for p in range(2) for j in range(NJ(S)[p])]

def plan(groups, first=False, last=False, final=False, epi=None, b_dma_here=False, b_start=2, no_b2=False, cold=False, reserve=None, pf=False, S=16):
    mf = []; xuse = {}; wuse = {}; accw = {}
    seen = set()
    raw = []
    nxd = 9 if S == 16 else 8
    for g, (ks, p, lo, hi, gnb, gtaps) in enumerate(groups):
        cnt = 0
        JW = (int(os.environ.get("JWE", "1")) if epi else int(os.environ.get("JW", "4"))) if len(gtaps) == 5 else 1
        for pi, j0 in enumerate(range(lo, hi, JW)):
            jj = list(range(j0, min(j0 + JW, hi)))
            nbs = list(gnb) if pi % 2 == 0 else list(gnb)[::-1]
            for ni, nb in enumerate(nbs):
                for j in (jj if ni % 2 == 0 else jj[::-1]):
                    taps = list(gtaps) if cnt % 2 == 0 else list(gtaps)[::-1]
                    cnt += 1
                    for i in taps:
                        zero = first and (p, j, nb) not in seen
                        seen.add((p, j, nb))
                        idx = len(raw)
                        raw.append((g, ks, p, j, nb, i, zero))
                        xuse.setdefault((g, j + i), []).append(idx)
                        wuse.setdefault((ks, i, nb), []).append(idx)
                        accw.setdefault((p, j, nb), []).append(idx)
    NMR = len(raw)
    frs = sorted(xuse.keys(), key=lambda t: min(xuse[t]))
    import random
    best = None
    for LEAD in (40, 30, 24, 18, 14, 10, 8):
        rnd = random.Random(1)
        for attempt in range(3000):
            slot = {}; sfree = {sl: 0 for sl in range(12)}; ok = True
            for (g, q) in frs:
                lu = max(xuse[(g, q)]); fu = min(xuse[(g, q)])
                if g == 0 and q < PRE: sl = q
                else:
                    cand = [x for x in range(12) if sfree[x] <= max(0, fu - LEAD) and not (x < PRE and g == 0 and (0, x) in xuse and (0, x) not in slot)
                            and (final or x >= PRE or lu < NMR - 14 + x)]
                    if not cand: ok = False; break
                    cand.sort(key=lambda x: sfree[x])
                    sl = cand[0] if (attempt == 0 or rnd.random() < 0.6) else rnd.choice(cand)
                slot[(g, q)] = sl; sfree[sl] = lu + 1
            if ok: best = slot; break
        if best: break
    assert best
    slot = best
    for (g, ks, p, j, nb, i, zero) in raw:
        acc = ACCS(p, j, nb)
        sub = 'A' if ks == 0 else 'B'
        mf.append(I("v_mfma_f32_16x16x32_bf16 %s, %s, %s, %s" % (acc, WREG(ks, i, nb), XREG(slot[(g, j + i)]), "0" if zero else acc),
                    needs=[('xr', g, j + i), ('wt', sub, i, nb, 0), ('wt', sub, i, nb, 1)]))
    NM = len(mf)
    gaps = [[] for _ in range(NM + 2)]
    used = [0] * (NM + 2); usedv = [0] * (NM + 2)
    for k_, c_ in (reserve or {}).items(): used[k_] += c_
    m0lock = set()
    def put(k, ins):
        c, v = cost(ins)
        gaps[k].append(ins); used[k] += c; usedv[k] += v
    def fits(k, c, v, cap=12, capv=8):
        return used[k] + c <= max(cap, c) and usedv[k] + v <= max(capv, v)
    def place(k, ins):
        tup = ins if isinstance(ins, tuple) else (ins,)
        tup = tuple(x if isinstance(x, I) else I(x) for x in tup)
        c = sum(cost(x)[0] for x in tup); v = sum(cost(x)[1] for x in tup)
        while not fits(k, c, v): k += 1
        for x in tup: put(k, x)
        return k
    def place_dma(k, pair):
        m, d = pair
        while not (k not in m0lock and k + 1 not in m0lock and fits(k, 4, 0) and fits(k + 1, 4, 4)): k += 1
        put(k, m); put(k + 1, d); m0lock.add(k); m0lock.add(k + 1)
        return k + 1
    slot_free = {}
    prev_k = 0
    for (g, q) in frs:
        sl = slot[(g, q)]
        if g == 0 and q < PRE:
            assert sl == q
        else:
            fu = min(xuse[(g, q)])
            k = place(max(slot_free.get(sl, 0), prev_k, fu - 60), xread(groups[g][0], groups[g][1], q, sl, ('xr', g, q), S))
            assert k < fu - 5, (g, q, k, fu)
            prev_k = k
        slot_free[sl] = max(xuse[(g, q)]) + 1
    if not final:
        bar_gap = max(prev_k + 8, slot_free[0])
        put(bar_gap, I("s_barrier", needs=[('xd', k) for k in range(nxd)] + [('xr',) + t for t in frs]))
        kk = bar_gap + 1
        for a_ in range(4):
            kk = place(kk, "v_xor_b32 v%d, 0x%x, v%d" % (V_XA + a_, SLOT_XOR, V_XA + a_))
        for q in range(PRE):
            kk = place(max(kk, slot_free[q]), xread(0, 0, q, q, ('xr', 'n', q)))
        assert kk <= NM - 3, kk
    def trs(sub, st, start, tr_end, sp_from=None, regions=WORDER, ready=None, check=False):
        n_ = 4 * len(regions)
        sp = max(1, min(TRSP, (tr_end - (sp_from or start)) // n_))
        k = start; done = {}
        for (hf, tap) in regions:
            for b in range(2):
                nb = 2 * hf + b
                for t in range(2):
                    e0 = max(wuse[(st, tap, nb)]) + 1 if sub == 'A2' else 0
                    if ready: e0 = max(e0, ready.get((hf, tap), 0))
                    k = place(max(k, e0), wtr(sub, st, tap, nb, t))
                    if sub != 'A2': assert k < min(wuse[(st, tap, nb)]) - 4, (sub, tap, nb, k, min(wuse[(st, tap, nb)]))
                    done[(hf, tap)] = k
                    k += sp
        assert k - sp < NM - 2
        return done
    def dmas(nsub, prev, done, start, end, maxsp, regions=WORDER):
        at = {}
        n_ = 2 * len(regions)
        dsp = max(2.0, min(float(maxsp), (end - start) / float(n_)))
        i = 0; kl = start - 2; base = start
        for (hf, tap) in regions:
            for dh in range(2):
                tgt = int(base + i * dsp)
                rdy = done.get((hf, tap), -6) + 6
                if rdy > tgt:
                    base = rdy; dsp = max(2.0, min(float(maxsp), (end - rdy) / float(n_ - i))); base -= i * dsp; tgt = rdy
                kl = place_dma(max(tgt, kl + 1), wdma(nsub, prev, tap, dh, hf))
                at[(hf, tap)] = kl
                i += 1
        place(kl + 1, WADV)
        return at
    st1_first = min(min(v) for (ks, i, nb), v in wuse.items() if ks == 1)
    st0_first_free = min(max(v) for (ks, i, nb), v in wuse.items() if ks == 0) + 1
    st0_end = max(max(v) for (ks, i, nb), v in wuse.items() if ks == 0) + 1
    if cold:
        CSP = int(os.environ.get("CSP", "6")); CLAT = int(os.environ.get("CLAT", "70"))
        hf1 = [r for r in WORDER if r[0] == 1]
        aA = dmas('A', None, {}, 1, 1 + 10 * CSP, CSP, hf1)
        r2 = [(0, t) for t in T2]
        fu2 = min(min(wuse[(0, t, nb)]) for t in T2 for nb in (0, 1))
        dA = trs('A', 0, max(2, fu2 - 40), fu2 - 8, regions=r2)
        fu3 = min(min(wuse[(0, t, nb)]) for t in range(5) for nb in (2, 3))
        dA.update(trs('A', 0, max(aA.values()) + 20, fu3 - 6, regions=hf1, ready={r: aA[r] + CLAT for r in hf1}))
        aB = dmas('B', 'A', dA, max(aA.values()) + CSP, 9999, CSP)
        d1 = trs('B', 1, min(aB.values()) + CLAT, st1_first - 6, regions=WORDER, ready={r: aB[r] + CLAT for r in WORDER})
        k = max(max(aB.values()) + 4, d1[WORDER[0]] + 6)
        aA2 = dmas('A2', 'B', d1, k, 470, WSPACE)
        d2 = trs('A2', 0, min(aA2.values()) + CLAT, NM - 40, regions=WORDER, ready={r: aA2[r] + CLAT for r in WORDER})
        dmas('B2', 'A2', d2, max(max(aA2.values()) + 4, d2[WORDER[0]] + 6), NM - 24, WSPACE)
    else:
        if b_dma_here:
            dmas('B', 'A', {}, 1, b_start - 40, WSPACE)
        d1 = trs('B', 1, b_start, st1_first - 6)
    if not final:
        if not cold:
            k = d1[WORDER[0]] + 6
            if last: place(k - 3, WRESET)
            dmas('A2', 'B', d1, k, st0_end - 80, WSPACE)
            d2 = trs('A2', 0, st0_first_free, NM - 12 if no_b2 else NM - 70, st0_end)
            if not no_b2:
                dmas('B2', 'A2', d2, d2[WORDER[0]] + 6, NM - 24, WSPACE)
        k = int(os.environ.get("CX0", "170")) if cold else 7
        if last:
            for s_ in xsrd_tile_ins(): k = place(k, s_)
            k += 2
        xsp = min(XSPACE, (bar_gap - XLAT - k) // nxd)
        for kx in range(nxd):
            k = place_dma(k, xdma(kx)); kl = k
            k += xsp
        k = kl + 1
        for s_ in XDMA_POST: k = place(k, s_)
    if pf and PF:
        if pf == 'disp':
            kq_ = place(270, (I("s_cmp_lt_u32 s%d, s%d" % (S_DW, S_DT)), I("s_cbranch_scc1 L_disp"), I("PFSLOT", ('pf',), 'v')))
            place(kq_ + 1, (I("s_mov_b64 s[96:97], s[94:95]"), I("s_memrealtime s[94:95]")))
        else:
            place(270, I("global_load_dword v44, v47, s[88:89]", ('pf',), 'v'))
    if epi:
        base_gaps = [list(g) for g in gaps]; base_used = list(used); base_usedv = list(usedv)
        done = False
        for num in range(0, 33):
            gaps[:] = [list(g) for g in base_gaps]; used[:] = base_used; usedv[:] = base_usedv
            def extra(k):
                if num <= 16: return 4 if (k * num) % 16 < num else 0
                return 8 if (k * (num - 16)) % 16 < (num - 16) else 4
            units = []
            for (which, p, j) in epi:
                rdy = (max(max(accw[(p, j, nb)]) for nb in range(4)) + 9) if which == 'own' else 0
                slots_ = epi_block(p, j, EPI_TB)
                for si, slt in enumerate(slots_):
                    if si == len(slots_) - 1: units.append((tuple(slt), rdy, 10 ** 6)); continue
                    for ins in slt:
                        dl = 10 ** 6
                        ar = acc_reads(ins.t)
                        if which == 'prev' and ar is not None:
                            for nb in range(4):
                                kind, b = ACC(p, j, nb)
                                if kind == ar[0] and b <= ar[1] < b + 4 and (p, j, nb) in accw: dl = min(accw[(p, j, nb)])
                        units.append(((ins,), rdy, dl))
            rw = [rw_sets(u[0]) for u in units]
            placed = [None] * len(units)
            head = 0; ok = True; k = 0; klast = 0
            while head < len(units):
                if k >= NM - 3: ok = False; break
                progress = True
                while progress:
                    progress = False
                    for i in range(head, min(head + 28, len(units))):
                        if placed[i] is not None: continue
                        u, rdy, dl = units[i]
                        if k < rdy: break
                        c = sum(cost(x)[0] for x in u); v = sum(cost(x)[1] for x in u)
                        if not (used[k] + c <= 12 + extra(k) and usedv[k] + v <= 8 + extra(k)): continue
                        R, Wr = rw[i]
                        dep_ok = True
                        for i2 in range(max(0, head - 40), i):
                            R2, W2 = rw[i2]
                            if (W2 & (R | Wr)) or (R2 & Wr):
                                if placed[i2] is None: dep_ok = False; break
                                slow = units[i2][0][-1].t.split()[0] in ("v_exp_f32", "v_rcp_f32", "buffer_store_dwordx4")
                                if slow and placed[i2] >= k - (1 if units[i2][0][-1].t.startswith("buffer") else 0) and placed[i2] + (2 if units[i2][0][-1].t.startswith("buffer") else 1) > k:
                                    dep_ok = False; break
                        if not dep_ok: continue
                        if k > dl: ok = False
                        for x in u: put(k, x)
                        placed[i] = k; klast = k; progress = True
                        break
                    while head < len(units) and placed[head] is not None: head += 1
                if not ok: break
                k += 1
            k = klast
            if ok:
                sys.stderr.write("epilogue fill: num=%d ends at gap %d\n" % (num, k)); done = True; break
        assert done
    pos_ = {}
    for k in range(NM + 1):
        for ins in gaps[k]:
            if ins.tag: pos_[ins.tag] = k
    md = min([k - pos_[n] for k in range(NM + 1) for ins in gaps[k] for n in ins.needs if n[0] == 'wd' and n in pos_] + [9999])
    assert md >= 50, md
    seq = []
    assert not gaps[NM + 1]
    for k in range(NM + 1):
        items = [x for x in gaps[k] if x.t.startswith("s_")] + [x for x in gaps[k] if not x.t.startswith("s_")]
        if k < NM: items.append(mf[k])
        tags_here = set(x.tag for x in items if x.tag)
        needs = []
        for x in items:
            for n_ in x.needs:
                assert n_ not in tags_here
                needs.append(n_)
        for idx, x in enumerate(items):
            y = I(x.t, x.tag, x.cls, needs if idx == 0 else [])
            y.gap = k; seq.append(y)
    return seq

def rename_exit(q):
    r = []
    for t in q:
        if t[0] == 'xr': r.append(('xr', 0, t[2]) if t[1] == 'n' else ('old',))
        elif t[0] in ('wt', 'wd') and t[1] in ('A2', 'B2'): r.append((t[0], t[1][0]) + t[2:])
        else: r.append(('old',))
    return r

def simulate(seq, entry, forced=None):
    vq, lq = list(entry[0]), list(entry[1])
    issued = set(entry[2])
    waits = {}; pos = {}
    for i, ins in enumerate(seq):
        vm = lg = None
        for n in ins.needs:
            assert n in issued, ("need not issued", n, ins.t)
            if n in vq:
                c = len(vq) - 1 - vq.index(n); vm = c if vm is None else min(vm, c)
            if n in lq:
                c = len(lq) - 1 - lq.index(n); lg = c if lg is None else min(lg, c)
        g_ = getattr(ins, 'gap', None)
        if g_ is not None:
            if vm is not None:
                old_ = [j for j, t in enumerate(vq) if pos.get(t, 0) <= g_ - VOLD]
                if old_: vm = min(vm, len(vq) - 1 - max(old_))
            if lg is not None:
                old_ = [j for j, t in enumerate(lq) if pos.get(t, 0) <= g_ - LOLD]
                if old_: lg = min(lg, len(lq) - 1 - max(old_))
        if forced and i in forced:
            fv, fl = forced[i]
            if fv is not None: vm = fv if vm is None else min(vm, fv)
            if fl is not None: lg = fl if lg is None else min(lg, fl)
        if vm is not None:
            assert vm <= 63
            if vm < len(vq): vq = vq[len(vq) - vm:] if vm else []
        if lg is not None:
            lg = min(lg, 15)
            if lg < len(lq): lq = lq[len(lq) - lg:] if lg else []
        if vm is not None or lg is not None: waits[i] = (vm, lg)
        if ins.cls == 'v': vq.append(ins.tag)
        if ins.cls == 'l': lq.append(ins.tag)
        if ins.tag:
            issued.add(ins.tag); pos[ins.tag] = getattr(ins, 'gap', -999)
    return waits, (rename_exit(vq), rename_exit(lq), frozenset(t for t in rename_exit(sorted(issued, key=str)) if t != ('old',)))

def merge(w1, w2):
    r = dict(w1)
    for i, (v, l) in w2.items():
        if i in r:
            a, b = r[i]
            v2 = a if v is None else (v if a is None else min(a, v))
            l2 = b if l is None else (l if b is None else min(b, l))
            r[i] = (v2, l2)
        else: r[i] = (v, l)
    return r

def emit(seq, waits, stamps_at=()):
    nm = 0
    for i, ins in enumerate(seq):
        if ins.t.startswith("v_mfma"):
            if nm in stamps_at: stamp()
            nm += 1
        if i in waits:
            v, l = waits[i]
            w = []
            if v is not None: w.append("vmcnt(%d)" % v)
            if l is not None: w.append("lgkmcnt(%d)" % l)
            e("s_waitcnt " + " ".join(w))
        if ins.t == "STAMP": stamp()
        elif ins.t == "PFSLOT":
            lab("L_pf")
            e("global_load_dword v44, v47, s[88:89]")
            lab("L_mid2")
        else: e(ins.t)
    return
def emit_old(seq, waits):
    for i, ins in enumerate(seq):
        if i in waits:
            v, l = waits[i]
            w = []
            if v is not None: w.append("vmcnt(%d)" % v)
            if l is not None: w.append("lgkmcnt(%d)" % l)
            e("s_waitcnt " + " ".join(w))
        e(ins.t)

NE7 = int(os.environ.get("NE7", "9"))
NE7F = int(os.environ.get("NE7F", "10"))
NE7G = {15: int(os.environ.get("NE7G15", "10")), 14: int(os.environ.get("NE7G14", "9"))}
NBIG = int(os.environ.get("NBIG", "160"))

def out_switch():
    e("s_add_u32 s%d, s%d, s%d" % (S_OSRD, S_OPTR, S_NB))
    e("s_addc_u32 s%d, s%d, 0" % (S_OSRD + 1, S_OPTR + 1))
    e("s_add_u32 s%d, s%d, s%d" % (S_OBASE, S_NTB, S_OCOL))
    e("v_mad_i32_i24 v%d, v%d, s%d, v%d" % (V_OOFF, V_M, S_K, V_OOFF))
    e("s_movk_i32 s%d, 100" % S_DC)
    e("s_movk_i32 s%d, 100" % S_DW)
    e("s_mov_b32 s%d, 6" % S_CNT)

def tail(S, ne):
    cm("exposed epilogue")
    e("s_nop 7")
    for (p, j) in BLOCKS(S)[ne:]:
        if os.environ.get("NOPK"):
            for slt in epi_block(p, j, EPI_TB):
                for ins in slt: e(ins.t)
        else:
            for ins in epi_block_pk(p, j, EPI_TB): e(ins)
        e("s_nop 1")
    stamp()
    e("s_waitcnt vmcnt(0) lgkmcnt(0)")
    e("s_endpgm")
    lab("L_e%d" % S)

def main_kernel():
    K = NAME + "_kernel"
    out.append(".globl " + K); out.append(".p2align 8"); out.append(".type %s,@function" % K)
    lab(K)
    e("s_load_dwordx8 s[%d:%d], s[0:1], 0" % (S_XPTR, S_XPTR + 7))
    if STAMP: e("s_load_dwordx2 s[%d:%d], s[0:1], 32" % (S_WSP, S_WSP + 1))
    e("s_cmp_ge_u32 s2, 256")
    e("s_cbranch_scc1 L_done")
    e("s_and_b32 s%d, s2, 7" % S_T0)
    e("s_lshr_b32 s%d, s2, 3" % (S_T0 + 1))
    e("s_and_b32 s%d, s%d, 3" % (S_NT, S_T0 + 1))
    e("s_lshr_b32 s%d, s%d, 2" % (S_T0 + 1, S_T0 + 1))
    e("s_lshl_b32 s%d, s%d, 3" % (S_T0 + 1, S_T0 + 1))
    e("s_add_u32 s%d, s%d, s%d" % (S_T0, S_T0, S_T0 + 1))
    e("s_cmp_ge_u32 s%d, 32" % S_T0)
    e("s_cselect_b32 s%d, %d, 0" % (S_T0 + 5, BATCHB))
    e("s_and_b32 s%d, s%d, 31" % (S_T0, S_T0))
    e("s_lshl_b32 s%d, s%d, 18" % (S_TB, S_T0))
    e("s_sub_u32 s%d, s%d, 0x2000" % (S_T0 + 2, S_TB))
    e("s_getpc_b64 s[86:87]")
    lab("L_pc")
    e("s_add_u32 s88, s86, L_disp-L_pc")
    e("s_addc_u32 s89, s87, 0")
    e("s_add_u32 s86, s86, L_c0-L_pc")
    e("s_addc_u32 s87, s87, 0")
    e("v_lshlrev_b32 v47, 6, v0")
    e("global_load_dword v44, v47, s[86:87]")
    e("v_lshrrev_b32 v%d, 6, v0" % V_T)
    e("v_and_b32 v%d, 63, v0" % (V_T + 1))
    L = V_T + 1
    e("v_lshrrev_b32 v%d, 2, v%d" % (V_WOFF, L))
    e("v_readfirstlane_b32 s3, v%d" % V_T)
    e("v_lshlrev_b32 v%d, 11, v%d" % (V_WOFF, V_WOFF))
    e("v_and_b32 v%d, 3, v%d" % (V_T + 2, L))
    e("v_lshl_add_u32 v%d, v%d, 4, v%d" % (V_WOFF, V_T + 2, V_WOFF))
    SG = V_T + 2; PI = V_T + 3; C = V_T + 4; MP = V_T + 5; F = V_T + 6; SG0 = V_T + 7
    e("v_lshrrev_b32 v%d, 3, v%d" % (SG0, L))
    e("v_and_b32 v%d, 7, v%d" % (PI, L))
    e("s_lshl_b32 s%d, s%d, 2" % (S_T0, S_NT))
    e("s_add_u32 s%d, s%d, s3" % (S_T0, S_T0))
    e("s_lshl_b32 s%d, s%d, 6" % (S_OCOL, S_T0))
    e("s_mul_i32 s%d, s3, 20480" % S_WL)
    e("s_add_u32 s%d, s%d, %d" % (S_WL, S_WL, WL1 - 20480))
    e("s_cmp_eq_u32 s3, 0")
    e("s_cselect_b32 s%d, %d, s%d" % (S_WL, WL0, S_WL))
    e("s_mov_b32 s%d, %d" % (S_WSRD + 2, WPB))
    e("s_mov_b32 s%d, 0x20000" % (S_WSRD + 3))
    e("s_mov_b32 s%d, 0x20000" % (S_XSRD + 3))
    for tap in range(5):
        for dh in range(2): e("s_mov_b32 s%d, %d" % (S_WC + tap * 2 + dh, tap * 1048576 + dh * 32768))
    e("s_lshl_b32 s%d, s3, 6" % (S_T0 + 3))
    e("s_lshl_b32 s%d, s3, 3" % (S_T0 + 4))
    e("s_add_u32 s%d, s%d, 256" % (S_T0 + 4, S_T0 + 4))
    e("s_lshl_b32 s%d, s3, 13" % S_M0)
    e("s_lshl_b32 s%d, s3, 10" % S_M0H)
    e("s_cmp_lt_u32 s3, 2")
    e("s_mov_b32 s%d, %d" % (S_T0, XSCRATCH - 2048))
    e("s_cselect_b32 s%d, 0x8000, s%d" % (S_T0, S_T0))
    e("s_cselect_b32 s%d, 0x%x, 0" % (S_HX, SLOT_XOR))
    e("s_cselect_b32 s%d, 0, 0x80000000" % S_HEXEC)
    e("s_add_u32 s%d, s%d, s%d" % (S_M0H, S_M0H, S_T0))
    e("s_mov_b32 s%d, %d" % (S_XSRD + 2, BATCHB))
    e("v_mov_b32 v%d, 0" % V_MP)
    e("v_mov_b32 v%d, 0" % (V_MP + 1))
    for k in range(9):
        if k < 8:
            e("v_add_u32 v%d, s%d, v%d" % (SG, S_T0 + 3, SG0))
            e("s_add_u32 s%d, s%d, 8" % (S_T0 + 3, S_T0 + 3))
        else:
            e("v_add_u32 v%d, s%d, v%d" % (SG, S_T0 + 4, SG0))
        e("v_mul_u32_u24 v%d, 241, v%d" % (C, SG))
        e("v_lshrrev_b32 v%d, 12, v%d" % (C, C))
        e("v_mul_u32_u24 v%d, 17, v%d" % (MP, C))
        e("v_sub_u32 v%d, v%d, v%d" % (MP, SG, MP))
        e("v_bfe_u32 v%d, v%d, 1, 3" % (F, MP))
        e("v_xor_b32 v%d, v%d, v%d" % (F, F, PI))
        e("v_lshl_add_u32 v%d, v%d, 4, v%d" % (C, MP, C))
        e("v_lshlrev_b32 v%d, 4, v%d" % (F, F))
        e("v_lshl_add_u32 v%d, v%d, 10, v%d" % (V_DCUR + k, C, F))
        e("v_add_u32 v%d, s%d, v%d" % (V_DCUR + k, S_T0 + 2, V_DCUR + k))
        e("v_lshl_or_b32 v%d, v%d, %d, v%d" % (V_MP + k // 6, MP, 5 * (k % 6), V_MP + k // 6))
    e("v_lshrrev_b32 v%d, 1, v%d" % (C, V_DCUR + 8))
    e("v_or_b32 v%d, s%d, v%d" % (C, S_HEXEC, C))
    e("s_cmp_lt_u32 s3, 2")
    e("s_cselect_b64 vcc, -1, 0")
    e("v_cndmask_b32 v%d, v%d, v%d, vcc" % (V_DCUR + 8, C, V_DCUR + 8))
    e("s_waitcnt lgkmcnt(0)")
    e("s_add_u32 s%d, s%d, s%d" % (S_XSRD, S_XPTR, S_T0 + 5))
    e("s_addc_u32 s%d, s%d, 0" % (S_XSRD + 1, S_XPTR + 1))
    e("s_add_u32 s%d, s%d, s%d" % (S_WSRD, S_XPTR + 2, S_OCOL))
    e("s_addc_u32 s%d, s%d, 0" % (S_WSRD + 1, S_XPTR + 3))
    e("s_mov_b64 s[%d:%d], s[%d:%d]" % (S_WB0, S_WB0 + 1, S_WSRD, S_WSRD + 1))
    e("s_mov_b32 s%d, s22" % S_DSRD)
    e("s_mov_b32 s%d, s23" % (S_DSRD + 1))
    e("s_mov_b32 s%d, s3" % S_WAVE)
    if STAMP:
        e("s_add_u32 s%d, s%d, 0x800000" % (S_SSRD, S_WSP))
        e("s_addc_u32 s%d, s%d, 0" % (S_SSRD + 1, S_WSP + 1))
        e("s_mov_b32 s%d, 0x40000" % (S_SSRD + 2))
        e("s_mov_b32 s%d, 0x20000" % (S_SSRD + 3))
        e("s_lshl_b32 s%d, s2, 9" % S_SOFF)
    stamp()
    pro = []
    def P(x):
        for y in (x if isinstance(x, tuple) else (x,)): pro.append(y if isinstance(y, I) else I(y))
    wd = [wdma('A2', None, tap, dh, hf) for (hf, tap) in WORDER for dh in range(2)]
    def PD(pair): P(pair[0]); P("s_nop 0"); P(pair[1])
    for k in range(9): PD(xdma(k))
    for k in range(10): PD(wd[k])
    for s_ in XDMA_POST: P(s_)
    KQ = V_T + 3; TMP = V_T + 4; TMP2 = V_T + 5; TMP3 = V_T + 6
    M = V_M
    P("v_and_b32 v%d, 15, v%d" % (M, L))
    P("v_lshrrev_b32 v%d, 4, v%d" % (KQ, L))
    P("v_lshrrev_b32 v%d, 1, v%d" % (TMP, KQ))
    P("v_lshlrev_b32 v%d, 11, v%d" % (TMP, TMP))
    P("v_and_b32 v%d, 1, v%d" % (TMP2, KQ))
    P("v_lshl_add_u32 v%d, v%d, 9, v%d" % (TMP, TMP2, TMP))
    P("v_lshl_add_u32 v%d, v%d, 4, v%d" % (TMP, M, TMP))
    P("v_add_u32 v%d, s%d, v%d" % (V_WTR, S_WL, TMP))
    P("v_lshlrev_b32 v%d, 14, v%d" % (V_OOFF, M))
    P("v_lshl_add_u32 v%d, v%d, 4, v%d" % (V_OOFF, KQ, V_OOFF))
    for s in range(2):
        for ks in range(2):
            dst = V_XA + s * 2 + ks
            P("v_add_u32 v%d, %d, v%d" % (TMP, s, M))
            P("v_bfe_u32 v%d, v%d, 1, 3" % (TMP2, TMP))
            P("v_add_u32 v%d, %d, v%d" % (TMP3, 4 * ks, KQ))
            P("v_xor_b32 v%d, v%d, v%d" % (TMP2, TMP2, TMP3))
            P("v_lshlrev_b32 v%d, 4, v%d" % (TMP2, TMP2))
            P("v_lshl_add_u32 v%d, v%d, 7, v%d" % (dst, TMP, TMP2))
    P("s_mov_b32 s%d, 0x4038aa3b" % S_C1)
    P("s_mov_b32 s%d, 0xbfb8aa3b" % S_C2)
    P("s_mov_b32 s%d, 0x41f00000" % S_C3)
    P("s_mov_b32 s%d, 0x20000" % (S_OSRD + 3))
    P("s_mov_b32 s%d, %d" % (S_OSRD + 2, BATCHB))
    P("s_movk_i32 s%d, 256" % (S_DSRD + 2))
    P("s_mov_b32 s%d, 0x20000" % (S_DSRD + 3))
    P("s_add_u32 s%d, s%d, s%d" % (S_OSRD, S_OPTR, S_T0 + 5))
    P("s_addc_u32 s%d, s%d, 0" % (S_OSRD + 1, S_OPTR + 1))
    P("s_add_u32 s%d, s%d, s%d" % (S_OBASE, S_TB, S_OCOL))
    P("s_mov_b32 s%d, 6" % S_DC)
    P("s_mov_b32 s%d, 7" % S_TRY)
    P("s_cmp_eq_u32 s%d, 0" % S_NT)
    P("s_cselect_b32 s%d, 5, 4" % S_DT)
    P("s_mov_b64 s[94:95], 0")
    P("s_cmp_eq_u32 s%d, 0" % S_WAVE)
    P("s_cselect_b32 s%d, 6, 64" % S_DW)
    P("s_getreg_b32 s%d, hwreg(HW_REG_XCC_ID, 0, 3)" % S_XCC)
    P("s_mov_b32 s%d, 6" % S_CNT)
    P("v_mov_b32 v%d, %d" % (V_TMP, RANK_LDS))
    P(I("s_barrier", needs=[('xd', k) for k in range(9)]))
    for q in range(PRE): P(xread(0, 0, q, q, ('xr', 'n', q)))
    for tap in T1:
        for nb in range(2):
            for t in range(2): P(wtr('A2', 0, tap, nb, t))
    w, st_pro = simulate(pro, ([('old',)], [], frozenset()))
    emit(pro, w)
    stamp()
    B0P = int(os.environ.get('B0P', '40'))
    prev = [('prev',) + b for b in BLOCKS(16)[NE7:]]
    makers = {
        'c0': lambda r: plan(COLD, first=True, cold=True, reserve=r),
        'm16': lambda r: plan(NAT(16), reserve=r, pf='disp'),
        'c7': lambda r: plan(PM7, last=True, epi=[('own',) + b for b in BLOCKS(16)[:NE7]], reserve=r, pf=True),
        'p16': lambda r: plan(REO2(16), first=True, b_start=B0P, epi=prev, reserve=r),
        'f16': lambda r: plan(PM(16), final=True, epi=[('own',) + b for b in BLOCKS(16)[:NE7F]], reserve=r),
    }
    succ = {'c0': ['m16'], 'm16': ['m16', 'c7', 'f16'], 'c7': ['p16'], 'p16': ['m16'], 'f16': []}
    for S_ in SMALL:
        makers['p%d' % S_] = (lambda S_: lambda r: plan(REO2(S_), first=True, b_start=B0P, epi=prev, reserve=r, S=S_))(S_)
        makers['m%d' % S_] = (lambda S_: lambda r: plan(NAT(S_), reserve=r, pf=True, S=S_))(S_)
        makers['f%d' % S_] = (lambda S_: lambda r: plan(PM(S_), final=True, epi=[('own',) + b for b in BLOCKS(S_)[:NE7G[S_]]], reserve=r, S=S_))(S_)
        succ['c7'].append('p%d' % S_); succ['p%d' % S_] = ['m%d' % S_]; succ['m%d' % S_] = ['m%d' % S_, 'f%d' % S_]; succ['f%d' % S_] = []
    res = {n: {} for n in makers}
    for outer in range(8):
        sq = {n: makers[n](res[n]) for n in makers}
        ent = {n: [] for n in makers}; ent['c0'] = [st_pro]
        wt = {n: {} for n in makers}
        for it in range(12):
            changed = False
            for n in makers:
                nw = dict(wt[n])
                for en in ent[n]: nw = merge(nw, simulate(sq[n], en, wt[n])[0])
                if nw != wt[n]: wt[n] = nw; changed = True
                for en in ent[n]:
                    ex = simulate(sq[n], en, wt[n])[1]
                    for m_ in succ[n]:
                        if ex not in ent[m_]: ent[m_].append(ex); changed = True
            if not changed: break
        assert not changed
        ch2 = False; rep = []
        for n in makers:
            tot = {}
            for i, ins in enumerate(sq[n]):
                if not ins.t.startswith("v_mfma"): tot[ins.gap] = tot.get(ins.gap, 0) + cost(ins)[0]
                if i in wt[n]: tot[ins.gap] = tot.get(ins.gap, 0) + 4
            rep.append((n, sum(max(0, v - 12) for v in tot.values()), len(wt[n])))
            for i in wt[n]:
                g_ = sq[n][i].gap
                if tot[g_] > 12 and g_ not in res[n]:
                    res[n][g_] = 4; ch2 = True
        sys.stderr.write("outer %d %s\n" % (outer, rep))
        if not ch2: break
    lab("L_c0")
    cm("chunk 0 (tile 0)")
    emit(sq['c0'], wt['c0'])
    out.append(".p2align 6")
    lab("L_mid")
    if os.environ.get("LOOPST"): stamp()
    emit(sq['m16'], wt['m16'])
    e("s_sub_u32 s%d, s%d, 1" % (S_DC, S_DC))
    e("s_sub_u32 s%d, s%d, 1" % (S_DW, S_DW))
    e("s_sub_u32 s%d, s%d, 1" % (S_CNT, S_CNT))
    e("s_cmp_lg_u32 s%d, 0" % S_CNT)
    e("s_cbranch_scc1 L_mid")
    stamp()
    e("s_cmp_lg_u32 s%d, 0" % S_DC)
    e("s_cbranch_scc1 L_f16")
    e("s_branch L_c7")
    lab("L_disp")
    cm("wave 0 only: time one chunk, publish per-XCC time, claim the second tile from the matching end of this n-tile's list")
    t = S_T0
    e("s_cmp_eq_u32 s%d, 4" % S_DW)
    e("s_cbranch_scc0 L_d3")
    e("s_lshl_b32 s%d, s%d, 2" % (t + 1, S_XCC))
    e("s_sub_u32 s%d, s94, s96" % t)
    e("s_min_u32 s%d, s%d, 4095" % (t, t))
    e("s_add_u32 s%d, s%d, 0x100000" % (t, t))
    e("v_mov_b32 v%d, s%d" % (V_RANK, t))
    e("s_mov_b64 exec, 1")
    e("buffer_atomic_add v%d, off, s[%d:%d], s%d offset:128" % (V_RANK, S_DSRD, S_DSRD + 3, t + 1))
    e("s_mov_b64 exec, -1")
    e("s_branch L_mid2")
    lab("L_d3")
    e("s_cmp_eq_u32 s%d, 3" % S_DW)
    e("s_cbranch_scc0 L_d2")
    e("v_lshlrev_b32 v%d, 2, v%d" % (V_T, V_M))
    e("s_mov_b64 exec, 0xff")
    e("buffer_load_dword v%d, v%d, s[%d:%d], 0 offen offset:128 sc0 sc1" % (V_RANK, V_T, S_DSRD, S_DSRD + 3))
    e("s_mov_b64 exec, -1")
    e("s_branch L_mid2")
    lab("L_d2")
    e("s_cmp_eq_u32 s%d, 2" % S_DW)
    e("s_cbranch_scc0 L_d1")
    e("s_waitcnt vmcnt(40)")
    e("v_readlane_b32 s%d, v%d, s%d" % (t, V_RANK, S_XCC))
    e("v_lshrrev_b32 v%d, 20, v%d" % (V_T, V_RANK))
    e("v_and_b32 v%d, 0xfffff, v%d" % (V_T + 1, V_RANK))
    e("s_lshr_b32 s%d, s%d, 20" % (t + 1, t))
    e("s_and_b32 s%d, s%d, 0xfffff" % (t, t))
    e("v_mul_u32_u24 v%d, s%d, v%d" % (V_T + 1, t + 1, V_T + 1))
    e("v_mul_u32_u24 v%d, s%d, v%d" % (V_T, t, V_T))
    e("s_mov_b64 exec, 0xff")
    e("v_cmp_gt_u32 vcc, v%d, v%d" % (V_T + 1, V_T))
    e("v_cmp_eq_u32 s[%d:%d], v%d, v%d" % (t + 2, t + 3, V_T + 1, V_T))
    e("s_mov_b64 exec, 1")
    e("v_mov_b32 v%d, 1" % V_RANK)
    e("s_bfm_b32 s%d, s%d, 0" % (t + 1, S_XCC))
    e("s_nop 2")
    e("s_and_b32 s%d, s%d, s%d" % (t + 2, t + 2, t + 1))
    e("s_or_b32 s%d, s%d, vcc_lo" % (t + 2, t + 2))
    e("s_bcnt1_i32_b32 s%d, s%d" % (S_PREF, t + 2))
    e("s_lshl_b32 s%d, s%d, 5" % (t + 1, S_NT))
    e("s_lshl_b32 s%d, s%d, 2" % (t, S_PREF))
    e("s_add_u32 s%d, s%d, s%d" % (t + 1, t + 1, t))
    e("buffer_atomic_add v%d, off, s[%d:%d], s%d sc0" % (V_RANK, S_DSRD, S_DSRD + 3, t + 1))
    e("s_mov_b64 exec, -1")
    e("s_branch L_mid2")
    lab("L_d1")
    e("s_waitcnt vmcnt(40)")
    lab("L_d1b")
    e("v_readfirstlane_b32 s%d, v%d" % (t, V_RANK))
    e("s_nop 3")
    e("s_cmp_lt_u32 s%d, 8" % t)
    e("s_cbranch_scc1 L_d1c")
    cm("region full (unusual placement or snapshot): take the next region that still has a free slot")
    e("s_add_u32 s%d, s%d, 1" % (S_PREF, S_PREF))
    e("s_and_b32 s%d, s%d, 7" % (S_PREF, S_PREF))
    e("s_lshl_b32 s%d, s%d, 5" % (t + 1, S_NT))
    e("s_lshl_b32 s%d, s%d, 2" % (t, S_PREF))
    e("s_add_u32 s%d, s%d, s%d" % (t + 1, t + 1, t))
    e("v_mov_b32 v%d, 1" % V_RANK)
    e("s_mov_b64 exec, 1")
    e("buffer_atomic_add v%d, off, s[%d:%d], s%d sc0" % (V_RANK, S_DSRD, S_DSRD + 3, t + 1))
    e("s_mov_b64 exec, -1")
    e("s_sub_u32 s%d, s%d, 1" % (S_TRY, S_TRY))
    e("s_waitcnt vmcnt(0)")
    e("s_cmp_lg_u32 s%d, 0" % S_TRY)
    e("s_cbranch_scc1 L_d1b")
    e("v_readfirstlane_b32 s%d, v%d" % (t, V_RANK))
    e("s_nop 3")
    e("s_and_b32 s%d, s%d, 7" % (t, t))
    lab("L_d1c")
    e("s_lshl_b32 s%d, s%d, 3" % (t + 1, S_PREF))
    e("s_add_u32 s%d, s%d, s%d" % (t, t, t + 1))
    e("v_mov_b32 v%d, s%d" % (V_RANK, t))
    e("ds_write_b32 v%d, v%d" % (V_TMP, V_RANK))
    e("s_branch L_pf")
    lab("L_c7")
    cm("decode the claimed second tile")
    r = S_T0
    e("ds_read_b32 v%d, v%d" % (V_RANK, V_TMP))
    e("s_waitcnt lgkmcnt(0)")
    e("v_readfirstlane_b32 s%d, v%d" % (r, V_RANK))
    e("s_nop 3")
    e("s_lshr_b32 s%d, s%d, 3" % (r + 1, r))
    e("s_and_b32 s%d, s%d, 3" % (r + 2, r))
    e("s_bitcmp1_b32 s%d, 2" % r)
    e("s_cselect_b32 s%d, %d, 0" % (S_NB, BATCHB))
    classes = []
    base = 8192
    for k_, S_ in enumerate(PATTERN):
        if not classes or classes[-1][0] != S_: classes.append((S_, k_, base))
        base += 64 * S_
    S0, k0, b0 = classes[0]
    e("s_movk_i32 s%d, %d" % (S_SMALL, S0))
    e("s_mov_b32 s%d, %d" % (r + 3, b0 - 64 * S0 * k0))
    for (S_, k_, b_) in classes[1:]:
        e("s_cmp_ge_u32 s%d, %d" % (r + 1, k_))
        e("s_cselect_b32 s%d, %d, s%d" % (S_SMALL, S_, S_SMALL))
        e("s_cselect_b32 s%d, %d, s%d" % (r + 3, b_ - 64 * S_ * k_, r + 3))
    e("s_lshl_b32 s%d, s%d, 2" % (r + 1, r + 1))
    e("s_add_u32 s%d, s%d, s%d" % (r + 1, r + 1, r + 2))
    e("s_mul_i32 s%d, s%d, s%d" % (r + 1, r + 1, S_SMALL))
    e("s_lshl_b32 s%d, s%d, 4" % (r + 1, r + 1))
    e("s_add_u32 s%d, s%d, s%d" % (r + 1, r + 1, r + 3))
    e("s_lshl_b32 s%d, s%d, 10" % (S_NTB, r + 1))
    e("s_sub_u32 s%d, s%d, s%d" % (S_DELTA, S_NTB, S_TB))
    e("s_mov_b32 s%d, L_p16-L_c0" % (r + 1))
    for S_ in SMALL:
        e("s_cmp_eq_u32 s%d, %d" % (S_SMALL, S_))
        e("s_cselect_b32 s%d, L_p%d-L_c0, s%d" % (r + 1, S_, r + 1))
    e("s_add_u32 s88, s86, s%d" % (r + 1))
    e("s_addc_u32 s89, s87, 0")
    e("s_sub_u32 s%d, s%d, 16" % (S_K, S_SMALL))
    e("s_lshl_b32 s%d, s%d, 10" % (S_K, S_K))
    cm("chunk 7 (tile 0)")
    emit(sq['c7'], wt['c7'])
    stamp()
    for S_ in SMALL:
        e("s_cmp_eq_u32 s%d, %d" % (S_SMALL, S_))
        e("s_cbranch_scc1 L_p%d" % S_)
    lab("L_p16")
    cm("chunk 0 (tile 1, 256 rows)")
    emit(sq['p16'], wt['p16'])
    out_switch()
    e("v_min_u32 v47, L_e16-L_f16-4, v47")
    e("s_add_u32 s88, s86, L_f16-L_c0")
    e("s_addc_u32 s89, s87, 0")
    stamp()
    e("s_branch L_mid")
    lab("L_f16")
    cm("chunk 7 (tile 1, 256 rows)")
    emit(sq['f16'], wt['f16'])
    stamp()
    tail(16, NE7F)
    for S_ in SMALL:
        lab("L_p%d" % S_)
        cm("chunk 0 (tile 1, %d rows)" % (16 * S_))
        emit(sq['p%d' % S_], wt['p%d' % S_])
        out_switch()
        e("v_min_u32 v47, L_e%d-L_f%d-4, v47" % (S_, S_))
        e("s_add_u32 s88, s86, L_f%d-L_c0" % S_)
        e("s_addc_u32 s89, s87, 0")
        stamp()
        out.append(".p2align 6")
        lab("L_mid%d" % S_)
        if os.environ.get("LOOPST"): stamp()
        emit(sq['m%d' % S_], wt['m%d' % S_])
        e("s_sub_u32 s%d, s%d, 1" % (S_CNT, S_CNT))
        e("s_cmp_lg_u32 s%d, 0" % S_CNT)
        e("s_cbranch_scc1 L_mid%d" % S_)
        stamp()
        lab("L_f%d" % S_)
        cm("chunk 7 (tile 1, %d rows)" % (16 * S_))
        emit(sq['f%d' % S_], wt['f%d' % S_])
        stamp()
        tail(S_, NE7G[S_])
    lab("L_done")
    e("s_endpgm")

hdr = open("cdna_kernels/%s.s.ref" % NAME).read().split("\n")
for l in hdr:
    if l.startswith(";") and "@launch" not in l and "Override" not in l and "grid=ceil" not in l:
        out.append(l)
out.append("; @launch grid=(256,1,1) block=(256,1,1) lds=%d" % LDS_BYTES)
out.append('.amdgcn_target "amdgcn-amd-amdhsa--gfx950"')
out.append(".text")
main_kernel()
out.append('.section .rodata,"a"')
out.append(".p2align 6")
out.append(".amdhsa_kernel %s_kernel" % NAME)
out += ["  .amdhsa_next_free_vgpr 512", "  .amdhsa_next_free_sgpr 100", "  .amdhsa_accum_offset 256",
        "  .amdhsa_group_segment_fixed_size 0", "  .amdhsa_kernarg_size 40", "  .amdhsa_user_sgpr_count 2",
        "  .amdhsa_user_sgpr_kernarg_segment_ptr 1", "  .amdhsa_system_sgpr_workgroup_id_x 1", ".end_amdhsa_kernel"]
dst = sys.argv[1] if len(sys.argv) > 1 else "cdna_kernels/%s.s" % NAME
open(dst, "w").write("\n".join(out) + "\n")
print("wrote", dst, len(out), "lines")
```

```python
import sys, os, re, copy

NAME = "standalone__autoregressive_conv_wavernn__speech"
T = 16000
BATCHB = T * 1024
WPB = 5 * 512 * 1024 * 2
SLOT_XOR = 0x10000
CLS = 17 * 128
WL0 = 34816
WL1 = 0x10000 + 34816
LDS_BYTES = WL1 + 3 * 20480
STAMP = os.environ.get("STAMP") is not None
MAPPING = int(os.environ.get("MAPPING", "0"))
CAP = int(os.environ.get("CAP", "8"))
WSPACE = int(os.environ.get("WSPACE", "13"))
XSPACE = int(os.environ.get("XSPACE", "36"))
XLAT = int(os.environ.get("XLAT", "150"))
TRSP = int(os.environ.get("TRSP", "3"))
VOLD = int(os.environ.get("VOLD", "120"))
LOLD = int(os.environ.get("LOLD", "12"))
PF = os.environ.get("NOPF") is None
XNT = "" if os.environ.get("NOXNT") else " nt"

out = []
def e(s): out.append(" " + s)
def lab(s): out.append(s + ":")
def cm(s): out.append("    ; " + s)

def WREGN(st, tap, nb): return st * 80 + (tap * 4 + nb) * 4
def WREG(st, tap, nb):
    b = WREGN(st, tap, nb); return "a[%d:%d]" % (b, b + 3)
def XREG(q):
    b = 160 + q * 4; return "a[%d:%d]" % (b, b + 3)
NVACC = 52
def ACC(p, j, nb):
    idx = (p * 8 + j) * 4 + nb
    if idx < NVACC: return ('v', 48 + idx * 4)
    return ('a', 208 + (idx - NVACC) * 4)
def ACCS(p, j, nb):
    k, b = ACC(p, j, nb); return "%s[%d:%d]" % (k, b, b + 3)

V_XA = 1; V_WOFF = 5; V_OOFF = 6; V_DCUR = 7
V_T = 16
V_WTR = 46
S_XSRD = 4; S_WSRD = 8; S_OSRD = 12
S_XPTR = 16; S_OPTR = 20
S_WAVE = 22; S_NT = 24; S_DC = 25
S_DSRD = 64; S_NB = 68; S_NTB = 69; S_NOCOL = 70; S_K = 71; S_SMALL = 72; S_DELTA = 73
S_DT = 28; S_TRY = 70; S_DW = 23; S_PREF = 74; S_XCC = 75

V_MP = 36; V_TMP = 38; V_M = 39; V_RANK = 45
RANK_LDS = 57344
S_M0 = 26; S_M0H = 27; S_WS = 28; S_WL = 29; S_CNT = 30
S_HEXEC = 32
S_T0 = 34
S_OBASE = 40; S_TILE = 41; S_C1 = 42; S_C2 = 43; S_TB = 44; S_OCOL = 45; S_ST = 46
S_SSRD = 48; S_SOFF = 52; S_WSP = 60
S_C3 = 47; S_HX = 31; S_WB0 = 62; S_WC = 76
XSCRATCH = 55296

_stn = [0]
NOSTAMP = [False]
def stamp():
    if not STAMP or NOSTAMP[0]: return
    _stn[0] += 1
    e("s_memtime s[56:57]"); e("s_memrealtime s[58:59]"); e("s_waitcnt lgkmcnt(0)")
    e("s_cmp_lg_u32 s%d, 0" % S_WAVE)
    e("s_cbranch_scc1 L_st%d" % _stn[0])
    for k in range(4): e("v_mov_b32 v%d, s%d" % (40 + k, 56 + k))
    e("s_mov_b64 exec, 1")
    e("buffer_store_dwordx4 v[40:43], off, s[%d:%d], s%d" % (S_SSRD, S_SSRD + 3, S_SOFF))
    e("s_mov_b64 exec, -1"); e("s_nop 1")
    lab("L_st%d" % _stn[0])
    e("s_add_u32 s%d, s%d, 16" % (S_SOFF, S_SOFF))

PRE = 6

class I:
    def __init__(self, t, tag=None, cls=None, needs=()):
        self.t = t; self.tag = tag; self.cls = cls; self.needs = list(needs)

MEMC = 4
def cost(ins):
    op = ins.t.split()[0]
    if op in ("v_exp_f32", "v_rcp_f32"): return (8, 8)
    if op.startswith("s_"): return (4, 0)
    return (4, 4)

def xread(ks, p, q, sl, tag, S=16):
    r = p + 2 * q
    s = 1 if r >= S else 0
    c = r - S * s
    return I("ds_read_b128 %s, v%d offset:%d" % (XREG(sl), V_XA + s * 2 + ks, c * CLS), tag, 'l')

def xsrd_tile_ins():
    ins = []
    ins.append(("s_add_u32 s%d, s%d, s%d" % (S_XSRD, S_XPTR, S_NB), "s_addc_u32 s%d, s%d, 0" % (S_XSRD + 1, S_XPTR + 1)))
    for k in range(9):
        ins.append(("v_bfe_u32 v%d, v%d, %d, 5" % (V_TMP, V_MP + k // 6, 5 * (k % 6)),
                    "v_mad_i32_i24 v%d, v%d, s%d, v%d" % (V_DCUR + k, V_TMP, S_K, V_DCUR + k)))
        ins.append(("v_add_u32 v%d, s%d, v%d" % (V_DCUR + k, S_DELTA, V_DCUR + k),))
    return ins

def xdma(k):
    ld = "buffer_load_dwordx4 v%d, s[%d:%d], 0 offen%s lds" % (V_DCUR + k, S_XSRD, S_XSRD + 3, XNT)
    m = ("s_add_u32 m0, s%d, %d" % (S_M0, k * 1024)) if k < 8 else ("s_mov_b32 m0, s%d" % S_M0H)
    return (I(m), I(ld, ('xd', k), 'v'))
XDMA_POST = [("s_add_u32 s%d, s%d, 128" % (S_XSRD, S_XSRD), "s_addc_u32 s%d, s%d, 0" % (S_XSRD + 1, S_XSRD + 1)),
             ("s_xor_b32 s%d, s%d, 0x%x" % (S_M0, S_M0, SLOT_XOR),),
             ("s_xor_b32 s%d, s%d, s%d" % (S_M0H, S_M0H, S_HX),)]

def wdma(sub, prev, tap, dh, hf):
    needs = [('wt', prev, tap, 2 * hf + b, t) for b in range(2) for t in range(2)] if prev else []
    return (I("s_add_u32 m0, s%d, %d" % (S_WL, tap * 4096 + dh * 2048)),
            I("buffer_load_dwordx4 v%d, s[%d:%d], s%d offen offset:%d lds" % (V_WOFF, S_WSRD, S_WSRD + 3, S_WC + tap * 2 + dh, hf * 1024),
              ('wd', sub, tap, dh, hf), 'v', needs))
def wtr(sub, st, tap, nb, t):
    b = WREGN(st, tap, nb) + 2 * t
    hf = nb >> 1
    return I("ds_read_b64_tr_b16 a[%d:%d], v%d offset:%d" % (b, b + 1, V_WTR, tap * 4096 + hf * 1024 + t * 256 + (nb & 1) * 8),
             ('wt', sub, tap, nb, t), 'l', [('wd', sub, tap, dh, hf) for dh in range(2)])
WADV = ("s_add_u32 s%d, s%d, 0x10000" % (S_WSRD, S_WSRD), "s_addc_u32 s%d, s%d, 0" % (S_WSRD + 1, S_WSRD + 1))
WRESET = ("s_mov_b32 s%d, s%d" % (S_WSRD, S_WB0), "s_mov_b32 s%d, s%d" % (S_WSRD + 1, S_WB0 + 1))

def epi_block(p, j, tb):
    sl = []
    regs = {}
    for nb in range(4):
        k, b = ACC(p, j, nb)
        for r in range(4): regs[(nb, r)] = (k, b + r)
    PK = tb
    for h in range(2):
        E = [(tb + 4 if h == 0 else 32) + k for k in range(4)]
        G = [(tb + 8 if h == 0 else 40) + k for k in range(4)]
        Dn = [tb + 12 + k for k in range(4)]
        src = {}; rd = []
        for k in range(4):
            kind, r = regs[(h, k)]
            if kind == 'a':
                rd.append("v_accvgpr_read_b32 v%d, a%d" % (E[k], r)); r = E[k]
            src[('e', k)] = r
            kind, r = regs[(2 + h, k)]
            if kind == 'a':
                rd.append("v_accvgpr_read_b32 v%d, a%d" % (G[k], r)); r = G[k]
            src[('g', k)] = r
        for i in range(0, len(rd), 2): sl.append(tuple(rd[i:i + 2]))
        mulE = ["v_mul_f32 v%d, s%d, v%d" % (E[k], S_C1, src[('e', k)]) for k in range(4)]
        mulG = ["v_mul_f32 v%d, s%d, v%d" % (G[k], S_C2, src[('g', k)]) for k in range(4)]
        mn = ["v_min_f32 v%d, s%d, v%d" % (E[k], S_C3, E[k]) for k in range(4)]
        eG = ["v_exp_f32 v%d, v%d" % (G[k], G[k]) for k in range(4)]
        eE = ["v_exp_f32 v%d, v%d" % (E[k], E[k]) for k in range(4)]
        aD = ["v_add_f32 v%d, 1.0, v%d" % (Dn[k], E[k]) for k in range(4)]
        den = ["v_fmac_f32 v%d, v%d, v%d" % (Dn[k], Dn[k], G[k]) for k in range(4)]
        rc = ["v_rcp_f32 v%d, v%d" % (Dn[k], Dn[k]) for k in range(4)]
        fin = ["v_fma_f32 v%d, v%d, v%d, -v%d" % (E[k], E[k], Dn[k], Dn[k]) for k in range(4)]
        cv = ["v_cvt_pk_bf16_f32 v%d, v%d, v%d" % (PK + 2 * h + k, E[2 * k], E[2 * k + 1]) for k in range(2)]
        sl += [(mulE[0], mulE[1]), (mulE[2], mulE[3]), (mn[0], mn[1]), (mn[2], mn[3]), (eE[0],), (mulG[0], mulG[1]), (eE[1],),
               (mulG[2], mulG[3]), (eE[2],), (eE[3],), (eG[0],), (aD[0], aD[1]), (eG[1],), (aD[2], aD[3]),
               (eG[2],), (eG[3],), (den[0], den[1]), (den[2], den[3]), (rc[0],), (rc[1],), (rc[2],), (rc[3],),
               (fin[0], fin[1]), (fin[2], fin[3]), (cv[0], cv[1])]
    res = [[I(x) for x in s] for s in sl]
    res.append([I("s_add_u32 s%d, s%d, %d" % (S_ST, S_OBASE, (p + 2 * j) * 1024)),
                I("buffer_store_dwordx4 v[%d:%d], v%d, s[%d:%d], s%d offen" % (PK, PK + 3, V_OOFF, S_OSRD, S_OSRD + 3, S_ST), ('st', p, j), 'v')])
    return res
def epi_block_pk(p, j, tb):
    ins = []
    PK = tb
    for h in range(2):
        E = tb + 4; G = tb + 8; Dn = tb + 12
        srcs = []
        for (nb, dst) in ((h, E), (2 + h, G)):
            k, b = ACC(p, j, nb)
            if k == 'a':
                for r in range(4): ins.append("v_accvgpr_read_b32 v%d, a%d" % (dst + r, b + r))
                b = dst
            srcs.append(b)
        pr = lambda b: "v[%d:%d]" % (b, b + 1)
        for u in (0, 2): ins.append("v_pk_mul_f32 %s, %s, s[%d:%d] op_sel_hi:[1,0]" % (pr(E + u), pr(srcs[0] + u), S_C1, S_C1 + 1))
        for u in (0, 2): ins.append("v_pk_mul_f32 %s, %s, s[%d:%d] op_sel:[0,1] op_sel_hi:[1,1]" % (pr(G + u), pr(srcs[1] + u), S_C1, S_C1 + 1))
        for k in range(4): ins.append("v_min_f32 v%d, s%d, v%d" % (E + k, S_C3, E + k))
        for k in range(4): ins.append("v_exp_f32 v%d, v%d" % (G + k, G + k))
        for k in range(4): ins.append("v_exp_f32 v%d, v%d" % (E + k, E + k))
        for u in (0, 2): ins.append("v_pk_add_f32 %s, %s, 1.0 op_sel_hi:[1,0]" % (pr(Dn + u), pr(E + u)))
        for u in (0, 2): ins.append("v_pk_fma_f32 %s, %s, %s, %s" % (pr(Dn + u), pr(Dn + u), pr(G + u), pr(Dn + u)))
        for k in range(4): ins.append("v_rcp_f32 v%d, v%d" % (Dn + k, Dn + k))
        for u in (0, 2): ins.append("v_pk_fma_f32 %s, %s, %s, %s neg_lo:[0,0,1] neg_hi:[0,0,1]" % (pr(E + u), pr(E + u), pr(Dn + u), pr(Dn + u)))
        for k in range(2): ins.append("v_cvt_pk_bf16_f32 v%d, v%d, v%d" % (PK + 2 * h + k, E + 2 * k, E + 2 * k + 1))
    ins.append("s_add_u32 s%d, s%d, %d" % (S_ST, S_OBASE, (p + 2 * j) * 1024))
    ins.append("buffer_store_dwordx4 v[%d:%d], v%d, s[%d:%d], s%d offen" % (PK, PK + 3, V_OOFF, S_OSRD, S_OSRD + 3, S_ST))
    return ins
EPI_TB = V_T

def rw_sets(unit):
    R = set(); Wr = set()
    for ins in unit:
        op, _, rest = ins.t.partition(' ')
        toks = [x.strip().lstrip('-') for x in rest.split(',')]
        def regs(tok):
            tok = tok.split(' ')[0]
            m = re.match(r"v\[(\d+):(\d+)\]$", tok)
            if m: return set(range(int(m.group(1)), int(m.group(2)) + 1))
            m = re.match(r"v(\d+)$", tok)
            return {int(m.group(1))} if m else set()
        if op.startswith("buffer_store"):
            for t_ in toks: R |= regs(t_)
            R.add('st'); Wr.add('st')
        elif op.startswith("v_"):
            Wr |= regs(toks[0])
            for t_ in toks[1:]: R |= regs(t_)
            if op == "v_fmac_f32": R |= regs(toks[0])
    return R, Wr

def acc_reads(t):
    m = re.match(r"v_accvgpr_read_b32 v\d+, a(\d+)", t)
    if m: return ('a', int(m.group(1)))
    m = re.match(r"v_mul_f32 v\d+, s\d+, v(\d+)", t)
    if m and int(m.group(1)) >= 48: return ('v', int(m.group(1)))
    return None

WORDER = [(hf, tap) for hf in range(2) for tap in range(5)]

ALLNB = (0, 1, 2, 3); ALLT = (0, 1, 2, 3, 4)
def G(ks, p, lo=0, hi=8, nbs=ALLNB, taps=ALLT): return (ks, p, lo, hi, nbs, taps)
def NJ(S): return ((S + 1) // 2, S // 2)
def NAT(S): return [G(ks, p, 0, NJ(S)[p]) for ks in range(2) for p in range(2)]
def PM(S): return [G(ks, p, lo, hi) for p in range(2) for (lo, hi) in ((0, 4), (4, NJ(S)[p])) for ks in range(2)]
def REO2(S): return [G(0, 0, 0, NJ(S)[0]), G(1, 0, 0, 4), G(0, 1, 0, NJ(S)[1]), G(1, 0, 4, NJ(S)[0]), G(1, 1, 0, NJ(S)[1])]
PATTERN = [int(c) for c in os.environ.get("PAT", "14,15,15,15,15,16,16,16").split(",")]
assert sum(PATTERN) * 64 == 7808 and len(PATTERN) == 8 and sorted(PATTERN) == PATTERN
SMALL = sorted(set(PATTERN) - {16}, reverse=True)
T1 = tuple(range(int(os.environ.get("CT1", "2"))))
T2 = tuple(range(len(T1), 5))
COLD = [G(0, 0, nbs=(0, 1), taps=T1), G(0, 1, nbs=(0, 1), taps=T1), G(0, 0, nbs=(0, 1), taps=T2), G(0, 1, nbs=(0, 1), taps=T2),
        G(0, 0, nbs=(2, 3)), G(0, 1, nbs=(2, 3)), G(1, 0), G(1, 1)]
PM7 = [G(0, 0, 0, 4), G(1, 0, 0, 4), G(0, 0, 4, 8), G(1, 0, 4, 8), G(0, 1), G(1, 1)]
def BLOCKS(S): return [(p, j) for p in range(2) for j in range(NJ(S)[p])]

def plan(groups, first=False, last=False, final=False, epi=None, b_dma_here=False, b_start=2, no_b2=False, cold=False, reserve=None, pf=False, S=16):
    mf = []; xuse = {}; wuse = {}; accw = {}
    seen = set()
    raw = []
    nxd = 9 if S == 16 else 8
    for g, (ks, p, lo, hi, gnb, gtaps) in enumerate(groups):
        cnt = 0
        JW = (int(os.environ.get("JWE", "1")) if epi else int(os.environ.get("JW", "4"))) if len(gtaps) == 5 else 1
        for pi, j0 in enumerate(range(lo, hi, JW)):
            jj = list(range(j0, min(j0 + JW, hi)))
            nbs = list(gnb) if pi % 2 == 0 else list(gnb)[::-1]
            for ni, nb in enumerate(nbs):
                for j in (jj if ni % 2 == 0 else jj[::-1]):
                    taps = list(gtaps) if cnt % 2 == 0 else list(gtaps)[::-1]
                    cnt += 1
                    for i in taps:
                        zero = first and (p, j, nb) not in seen
                        seen.add((p, j, nb))
                        idx = len(raw)
                        raw.append((g, ks, p, j, nb, i, zero))
                        xuse.setdefault((g, j + i), []).append(idx)
                        wuse.setdefault((ks, i, nb), []).append(idx)
                        accw.setdefault((p, j, nb), []).append(idx)
    NMR = len(raw)
    frs = sorted(xuse.keys(), key=lambda t: min(xuse[t]))
    import random
    best = None
    for LEAD in (40, 30, 24, 18, 14, 10, 8):
        rnd = random.Random(1)
        for attempt in range(3000):
            slot = {}; sfree = {sl: 0 for sl in range(12)}; ok = True
            for (g, q) in frs:
                lu = max(xuse[(g, q)]); fu = min(xuse[(g, q)])
                if g == 0 and q < PRE: sl = q
                else:
                    cand = [x for x in range(12) if sfree[x] <= max(0, fu - LEAD) and not (x < PRE and g == 0 and (0, x) in xuse and (0, x) not in slot)
                            and (final or x >= PRE or lu < NMR - 14 + x)]
                    if not cand: ok = False; break
                    cand.sort(key=lambda x: sfree[x])
                    sl = cand[0] if (attempt == 0 or rnd.random() < 0.6) else rnd.choice(cand)
                slot[(g, q)] = sl; sfree[sl] = lu + 1
            if ok: best = slot; break
        if best: break
    assert best
    slot = best
    for (g, ks, p, j, nb, i, zero) in raw:
        acc = ACCS(p, j, nb)
        sub = 'A' if ks == 0 else 'B'
        mf.append(I("v_mfma_f32_16x16x32_bf16 %s, %s, %s, %s" % (acc, WREG(ks, i, nb), XREG(slot[(g, j + i)]), "0" if zero else acc),
                    needs=[('xr', g, j + i), ('wt', sub, i, nb, 0), ('wt', sub, i, nb, 1)]))
    NM = len(mf)
    gaps = [[] for _ in range(NM + 2)]
    used = [0] * (NM + 2); usedv = [0] * (NM + 2)
    for k_, c_ in (reserve or {}).items(): used[k_] += c_
    m0lock = set()
    def put(k, ins):
        c, v = cost(ins)
        gaps[k].append(ins); used[k] += c; usedv[k] += v
    def fits(k, c, v, cap=12, capv=8):
        return used[k] + c <= max(cap, c) and usedv[k] + v <= max(capv, v)
    def place(k, ins):
        tup = ins if isinstance(ins, tuple) else (ins,)
        tup = tuple(x if isinstance(x, I) else I(x) for x in tup)
        c = sum(cost(x)[0] for x in tup); v = sum(cost(x)[1] for x in tup)
        while not fits(k, c, v): k += 1
        for x in tup: put(k, x)
        return k
    def place_dma(k, pair):
        m, d = pair
        while not (k not in m0lock and k + 1 not in m0lock and fits(k, 4, 0) and fits(k + 1, 4, 4)): k += 1
        put(k, m); put(k + 1, d); m0lock.add(k); m0lock.add(k + 1)
        return k + 1
    slot_free = {}
    prev_k = 0
    for (g, q) in frs:
        sl = slot[(g, q)]
        if g == 0 and q < PRE:
            assert sl == q
        else:
            fu = min(xuse[(g, q)])
            k = place(max(slot_free.get(sl, 0), prev_k, fu - 60), xread(groups[g][0], groups[g][1], q, sl, ('xr', g, q), S))
            assert k < fu - 5, (g, q, k, fu)
            prev_k = k
        slot_free[sl] = max(xuse[(g, q)]) + 1
    if not final:
        bar_gap = max(prev_k + 8, slot_free[0])
        put(bar_gap, I("s_barrier", needs=[('xd', k) for k in range(nxd)] + [('xr',) + t for t in frs]))
        kk = bar_gap + 1
        for a_ in range(4):
            kk = place(kk, "v_xor_b32 v%d, 0x%x, v%d" % (V_XA + a_, SLOT_XOR, V_XA + a_))
        for q in range(PRE):
            kk = place(max(kk, slot_free[q]), xread(0, 0, q, q, ('xr', 'n', q)))
        assert kk <= NM - 3, kk
    def trs(sub, st, start, tr_end, sp_from=None, regions=WORDER, ready=None, check=False):
        n_ = 4 * len(regions)
        sp = max(1, min(TRSP, (tr_end - (sp_from or start)) // n_))
        k = start; done = {}
        for (hf, tap) in regions:
            for b in range(2):
                nb = 2 * hf + b
                for t in range(2):
                    e0 = max(wuse[(st, tap, nb)]) + 1 if sub == 'A2' else 0
                    if ready: e0 = max(e0, ready.get((hf, tap), 0))
                    k = place(max(k, e0), wtr(sub, st, tap, nb, t))
                    if sub != 'A2': assert k < min(wuse[(st, tap, nb)]) - 4, (sub, tap, nb, k, min(wuse[(st, tap, nb)]))
                    done[(hf, tap)] = k
                    k += sp
        assert k - sp < NM - 2
        return done
    def dmas(nsub, prev, done, start, end, maxsp, regions=WORDER):
        at = {}
        n_ = 2 * len(regions)
        dsp = max(2.0, min(float(maxsp), (end - start) / float(n_)))
        i = 0; kl = start - 2; base = start
        for (hf, tap) in regions:
            for dh in range(2):
                tgt = int(base + i * dsp)
                rdy = done.get((hf, tap), -6) + 6
                if rdy > tgt:
                    base = rdy; dsp = max(2.0, min(float(maxsp), (end - rdy) / float(n_ - i))); base -= i * dsp; tgt = rdy
                kl = place_dma(max(tgt, kl + 1), wdma(nsub, prev, tap, dh, hf))
                at[(hf, tap)] = kl
                i += 1
        place(kl + 1, WADV)
        return at
    st1_first = min(min(v) for (ks, i, nb), v in wuse.items() if ks == 1)
    st0_first_free = min(max(v) for (ks, i, nb), v in wuse.items() if ks == 0) + 1
    st0_end = max(max(v) for (ks, i, nb), v in wuse.items() if ks == 0) + 1
    if cold:
        CSP = int(os.environ.get("CSP", "6")); CLAT = int(os.environ.get("CLAT", "70"))
        hf1 = [r for r in WORDER if r[0] == 1]
        aA = dmas('A', None, {}, 1, 1 + 10 * CSP, CSP, hf1)
        r2 = [(0, t) for t in T2]
        fu2 = min(min(wuse[(0, t, nb)]) for t in T2 for nb in (0, 1))
        dA = trs('A', 0, max(2, fu2 - 40), fu2 - 8, regions=r2)
        fu3 = min(min(wuse[(0, t, nb)]) for t in range(5) for nb in (2, 3))
        dA.update(trs('A', 0, max(aA.values()) + 20, fu3 - 6, regions=hf1, ready={r: aA[r] + CLAT for r in hf1}))
        aB = dmas('B', 'A', dA, max(aA.values()) + CSP, 9999, CSP)
        d1 = trs('B', 1, min(aB.values()) + CLAT, st1_first - 6, regions=WORDER, ready={r: aB[r] + CLAT for r in WORDER})
        k = max(max(aB.values()) + 4, d1[WORDER[0]] + 6)
        aA2 = dmas('A2', 'B', d1, k, 470, WSPACE)
        d2 = trs('A2', 0, min(aA2.values()) + CLAT, NM - 40, regions=WORDER, ready={r: aA2[r] + CLAT for r in WORDER})
        dmas('B2', 'A2', d2, max(max(aA2.values()) + 4, d2[WORDER[0]] + 6), NM - 24, WSPACE)
    else:
        if b_dma_here:
            dmas('B', 'A', {}, 1, b_start - 40, WSPACE)
        d1 = trs('B', 1, b_start, st1_first - 6)
    if not final:
        if not cold:
            k = d1[WORDER[0]] + 6
            if last: place(k - 3, WRESET)
            dmas('A2', 'B', d1, k, st0_end - 80, WSPACE)
            d2 = trs('A2', 0, st0_first_free, NM - 12 if no_b2 else NM - 70, st0_end)
            if not no_b2:
                dmas('B2', 'A2', d2, d2[WORDER[0]] + 6, NM - 24, WSPACE)
        k = int(os.environ.get("CX0", "170")) if cold else 7
        if last:
            for s_ in xsrd_tile_ins(): k = place(k, s_)
            k += 2
        xsp = min(XSPACE, (bar_gap - XLAT - k) // nxd)
        for kx in range(nxd):
            k = place_dma(k, xdma(kx)); kl = k
            k += xsp
        k = kl + 1
        for s_ in XDMA_POST: k = place(k, s_)
    if pf and PF:
        if pf == 'disp':
            kq_ = place(270, (I("s_cmp_lt_u32 s%d, s%d" % (S_DW, S_DT)), I("s_cbranch_scc1 L_disp"), I("PFSLOT", ('pf',), 'v')))
            place(kq_ + 1, (I("s_mov_b64 s[96:97], s[94:95]"), I("s_memrealtime s[94:95]")))
        else:
            place(270, I("global_load_dword v44, v47, s[88:89]", ('pf',), 'v'))
    if epi:
        base_gaps = [list(g) for g in gaps]; base_used = list(used); base_usedv = list(usedv)
        done = False
        for num in range(0, 33):
            gaps[:] = [list(g) for g in base_gaps]; used[:] = base_used; usedv[:] = base_usedv
            def extra(k):
                if num <= 16: return 4 if (k * num) % 16 < num else 0
                return 8 if (k * (num - 16)) % 16 < (num - 16) else 4
            units = []
            for (which, p, j) in epi:
                rdy = (max(max(accw[(p, j, nb)]) for nb in range(4)) + 9) if which == 'own' else 0
                slots_ = epi_block(p, j, EPI_TB)
                for si, slt in enumerate(slots_):
                    if si == len(slots_) - 1: units.append((tuple(slt), rdy, 10 ** 6)); continue
                    for ins in slt:
                        dl = 10 ** 6
                        ar = acc_reads(ins.t)
                        if which == 'prev' and ar is not None:
                            for nb in range(4):
                                kind, b = ACC(p, j, nb)
                                if kind == ar[0] and b <= ar[1] < b + 4 and (p, j, nb) in accw: dl = min(accw[(p, j, nb)])
                        units.append(((ins,), rdy, dl))
            rw = [rw_sets(u[0]) for u in units]
            placed = [None] * len(units)
            head = 0; ok = True; k = 0; klast = 0
            while head < len(units):
                if k >= NM - 3: ok = False; break
                progress = True
                while progress:
                    progress = False
                    for i in range(head, min(head + 28, len(units))):
                        if placed[i] is not None: continue
                        u, rdy, dl = units[i]
                        if k < rdy: break
                        c = sum(cost(x)[0] for x in u); v = sum(cost(x)[1] for x in u)
                        if not (used[k] + c <= 12 + extra(k) and usedv[k] + v <= 8 + extra(k)): continue
                        R, Wr = rw[i]
                        dep_ok = True
                        for i2 in range(max(0, head - 40), i):
                            R2, W2 = rw[i2]
                            if (W2 & (R | Wr)) or (R2 & Wr):
                                if placed[i2] is None: dep_ok = False; break
                                slow = units[i2][0][-1].t.split()[0] in ("v_exp_f32", "v_rcp_f32", "buffer_store_dwordx4")
                                if slow and placed[i2] >= k - (1 if units[i2][0][-1].t.startswith("buffer") else 0) and placed[i2] + (2 if units[i2][0][-1].t.startswith("buffer") else 1) > k:
                                    dep_ok = False; break
                        if not dep_ok: continue
                        if k > dl: ok = False
                        for x in u: put(k, x)
                        placed[i] = k; klast = k; progress = True
                        break
                    while head < len(units) and placed[head] is not None: head += 1
                if not ok: break
                k += 1
            k = klast
            if ok:
                sys.stderr.write("epilogue fill: num=%d ends at gap %d\n" % (num, k)); done = True; break
        assert done
    pos_ = {}
    for k in range(NM + 1):
        for ins in gaps[k]:
            if ins.tag: pos_[ins.tag] = k
    md = min([k - pos_[n] for k in range(NM + 1) for ins in gaps[k] for n in ins.needs if n[0] == 'wd' and n in pos_] + [9999])
    assert md >= 50, md
    seq = []
    assert not gaps[NM + 1]
    for k in range(NM + 1):
        items = [x for x in gaps[k] if x.t.startswith("s_")] + [x for x in gaps[k] if not x.t.startswith("s_")]
        if k < NM: items.append(mf[k])
        tags_here = set(x.tag for x in items if x.tag)
        needs = []
        for x in items:
            for n_ in x.needs:
                assert n_ not in tags_here
                needs.append(n_)
        for idx, x in enumerate(items):
            y = I(x.t, x.tag, x.cls, needs if idx == 0 else [])
            y.gap = k; seq.append(y)
    return seq

def rename_exit(q):
    r = []
    for t in q:
        if t[0] == 'xr': r.append(('xr', 0, t[2]) if t[1] == 'n' else ('old',))
        elif t[0] in ('wt', 'wd') and t[1] in ('A2', 'B2'): r.append((t[0], t[1][0]) + t[2:])
        else: r.append(('old',))
    return r

def simulate(seq, entry, forced=None):
    vq, lq = list(entry[0]), list(entry[1])
    issued = set(entry[2])
    waits = {}; pos = {}
    for i, ins in enumerate(seq):
        vm = lg = None
        for n in ins.needs:
            assert n in issued, ("need not issued", n, ins.t)
            if n in vq:
                c = len(vq) - 1 - vq.index(n); vm = c if vm is None else min(vm, c)
            if n in lq:
                c = len(lq) - 1 - lq.index(n); lg = c if lg is None else min(lg, c)
        g_ = getattr(ins, 'gap', None)
        if g_ is not None:
            if vm is not None:
                old_ = [j for j, t in enumerate(vq) if pos.get(t, 0) <= g_ - VOLD]
                if old_: vm = min(vm, len(vq) - 1 - max(old_))
            if lg is not None:
                old_ = [j for j, t in enumerate(lq) if pos.get(t, 0) <= g_ - LOLD]
                if old_: lg = min(lg, len(lq) - 1 - max(old_))
        if forced and i in forced:
            fv, fl = forced[i]
            if fv is not None: vm = fv if vm is None else min(vm, fv)
            if fl is not None: lg = fl if lg is None else min(lg, fl)
        if vm is not None:
            assert vm <= 63
            if vm < len(vq): vq = vq[len(vq) - vm:] if vm else []
        if lg is not None:
            lg = min(lg, 15)
            if lg < len(lq): lq = lq[len(lq) - lg:] if lg else []
        if vm is not None or lg is not None: waits[i] = (vm, lg)
        if ins.cls == 'v': vq.append(ins.tag)
        if ins.cls == 'l': lq.append(ins.tag)
        if ins.tag:
            issued.add(ins.tag); pos[ins.tag] = getattr(ins, 'gap', -999)
    return waits, (rename_exit(vq), rename_exit(lq), frozenset(t for t in rename_exit(sorted(issued, key=str)) if t != ('old',)))

def merge(w1, w2):
    r = dict(w1)
    for i, (v, l) in w2.items():
        if i in r:
            a, b = r[i]
            v2 = a if v is None else (v if a is None else min(a, v))
            l2 = b if l is None else (l if b is None else min(b, l))
            r[i] = (v2, l2)
        else: r[i] = (v, l)
    return r

def emit(seq, waits, stamps_at=()):
    nm = 0
    for i, ins in enumerate(seq):
        if ins.t.startswith("v_mfma"):
            if nm in stamps_at: stamp()
            nm += 1
        if i in waits:
            v, l = waits[i]
            w = []
            if v is not None: w.append("vmcnt(%d)" % v)
            if l is not None: w.append("lgkmcnt(%d)" % l)
            e("s_waitcnt " + " ".join(w))
        if ins.t == "STAMP": stamp()
        elif ins.t == "PFSLOT":
            lab("L_pf")
            e("global_load_dword v44, v47, s[88:89]")
            lab("L_mid2")
        else: e(ins.t)
    return
def emit_old(seq, waits):
    for i, ins in enumerate(seq):
        if i in waits:
            v, l = waits[i]
            w = []
            if v is not None: w.append("vmcnt(%d)" % v)
            if l is not None: w.append("lgkmcnt(%d)" % l)
            e("s_waitcnt " + " ".join(w))
        e(ins.t)

NE7 = int(os.environ.get("NE7", "9"))
NE7F = int(os.environ.get("NE7F", "10"))
NE7G = {15: int(os.environ.get("NE7G15", "10")), 14: int(os.environ.get("NE7G14", "9"))}
NBIG = int(os.environ.get("NBIG", "160"))

def out_switch():
    e("s_add_u32 s%d, s%d, s%d" % (S_OSRD, S_OPTR, S_NB))
    e("s_addc_u32 s%d, s%d, 0" % (S_OSRD + 1, S_OPTR + 1))
    e("s_add_u32 s%d, s%d, s%d" % (S_OBASE, S_NTB, S_OCOL))
    e("v_mad_i32_i24 v%d, v%d, s%d, v%d" % (V_OOFF, V_M, S_K, V_OOFF))
    e("s_movk_i32 s%d, 100" % S_DC)
    e("s_movk_i32 s%d, 100" % S_DW)
    e("s_mov_b32 s%d, 6" % S_CNT)

def tail(S, ne):
    cm("exposed epilogue")
    e("s_nop 7")
    for (p, j) in BLOCKS(S)[ne:]:
        if os.environ.get("NOPK"):
            for slt in epi_block(p, j, EPI_TB):
                for ins in slt: e(ins.t)
        else:
            for ins in epi_block_pk(p, j, EPI_TB): e(ins)
        e("s_nop 1")
    stamp()
    e("s_waitcnt vmcnt(0) lgkmcnt(0)")
    e("s_endpgm")
    lab("L_e%d" % S)

def main_kernel():
    K = NAME + "_kernel"
    out.append(".globl " + K); out.append(".p2align 8"); out.append(".type %s,@function" % K)
    lab(K)
    e("s_load_dwordx8 s[%d:%d], s[0:1], 0" % (S_XPTR, S_XPTR + 7))
    if STAMP: e("s_load_dwordx2 s[%d:%d], s[0:1], 32" % (S_WSP, S_WSP + 1))
    e("s_cmp_ge_u32 s2, 256")
    e("s_cbranch_scc1 L_done")
    e("s_and_b32 s%d, s2, 7" % S_T0)
    e("s_lshr_b32 s%d, s2, 3" % (S_T0 + 1))
    e("s_and_b32 s%d, s%d, 3" % (S_NT, S_T0 + 1))
    e("s_lshr_b32 s%d, s%d, 2" % (S_T0 + 1, S_T0 + 1))
    e("s_lshl_b32 s%d, s%d, 3" % (S_T0 + 1, S_T0 + 1))
    e("s_add_u32 s%d, s%d, s%d" % (S_T0, S_T0, S_T0 + 1))
    e("s_cmp_ge_u32 s%d, 32" % S_T0)
    e("s_cselect_b32 s%d, %d, 0" % (S_T0 + 5, BATCHB))
    e("s_and_b32 s%d, s%d, 31" % (S_T0, S_T0))
    e("s_lshl_b32 s%d, s%d, 18" % (S_TB, S_T0))
    e("s_sub_u32 s%d, s%d, 0x2000" % (S_T0 + 2, S_TB))
    e("s_getpc_b64 s[86:87]")
    lab("L_pc")
    e("s_add_u32 s88, s86, L_disp-L_pc")
    e("s_addc_u32 s89, s87, 0")
    e("s_add_u32 s86, s86, L_c0-L_pc")
    e("s_addc_u32 s87, s87, 0")
    e("v_lshlrev_b32 v47, 6, v0")
    e("global_load_dword v44, v47, s[86:87]")
    e("v_lshrrev_b32 v%d, 6, v0" % V_T)
    e("v_and_b32 v%d, 63, v0" % (V_T + 1))
    L = V_T + 1
    e("v_lshrrev_b32 v%d, 2, v%d" % (V_WOFF, L))
    e("v_readfirstlane_b32 s3, v%d" % V_T)
    e("v_lshlrev_b32 v%d, 11, v%d" % (V_WOFF, V_WOFF))
    e("v_and_b32 v%d, 3, v%d" % (V_T + 2, L))
    e("v_lshl_add_u32 v%d, v%d, 4, v%d" % (V_WOFF, V_T + 2, V_WOFF))
    SG = V_T + 2; PI = V_T + 3; C = V_T + 4; MP = V_T + 5; F = V_T + 6; SG0 = V_T + 7
    e("v_lshrrev_b32 v%d, 3, v%d" % (SG0, L))
    e("v_and_b32 v%d, 7, v%d" % (PI, L))
    e("s_lshl_b32 s%d, s%d, 2" % (S_T0, S_NT))
    e("s_add_u32 s%d, s%d, s3" % (S_T0, S_T0))
    e("s_lshl_b32 s%d, s%d, 6" % (S_OCOL, S_T0))
    e("s_mul_i32 s%d, s3, 20480" % S_WL)
    e("s_add_u32 s%d, s%d, %d" % (S_WL, S_WL, WL1 - 20480))
    e("s_cmp_eq_u32 s3, 0")
    e("s_cselect_b32 s%d, %d, s%d" % (S_WL, WL0, S_WL))
    e("s_mov_b32 s%d, %d" % (S_WSRD + 2, WPB))
    e("s_mov_b32 s%d, 0x20000" % (S_WSRD + 3))
    e("s_mov_b32 s%d, 0x20000" % (S_XSRD + 3))
    for tap in range(5):
        for dh in range(2): e("s_mov_b32 s%d, %d" % (S_WC + tap * 2 + dh, tap * 1048576 + dh * 32768))
    e("s_lshl_b32 s%d, s3, 6" % (S_T0 + 3))
    e("s_lshl_b32 s%d, s3, 3" % (S_T0 + 4))
    e("s_add_u32 s%d, s%d, 256" % (S_T0 + 4, S_T0 + 4))
    e("s_lshl_b32 s%d, s3, 13" % S_M0)
    e("s_lshl_b32 s%d, s3, 10" % S_M0H)
    e("s_cmp_lt_u32 s3, 2")
    e("s_mov_b32 s%d, %d" % (S_T0, XSCRATCH - 2048))
    e("s_cselect_b32 s%d, 0x8000, s%d" % (S_T0, S_T0))
    e("s_cselect_b32 s%d, 0x%x, 0" % (S_HX, SLOT_XOR))
    e("s_cselect_b32 s%d, 0, 0x80000000" % S_HEXEC)
    e("s_add_u32 s%d, s%d, s%d" % (S_M0H, S_M0H, S_T0))
    e("s_mov_b32 s%d, %d" % (S_XSRD + 2, BATCHB))
    e("v_mov_b32 v%d, 0" % V_MP)
    e("v_mov_b32 v%d, 0" % (V_MP + 1))
    for k in range(9):
        if k < 8:
            e("v_add_u32 v%d, s%d, v%d" % (SG, S_T0 + 3, SG0))
            e("s_add_u32 s%d, s%d, 8" % (S_T0 + 3, S_T0 + 3))
        else:
            e("v_add_u32 v%d, s%d, v%d" % (SG, S_T0 + 4, SG0))
        e("v_mul_u32_u24 v%d, 241, v%d" % (C, SG))
        e("v_lshrrev_b32 v%d, 12, v%d" % (C, C))
        e("v_mul_u32_u24 v%d, 17, v%d" % (MP, C))
        e("v_sub_u32 v%d, v%d, v%d" % (MP, SG, MP))
        e("v_bfe_u32 v%d, v%d, 1, 3" % (F, MP))
        e("v_xor_b32 v%d, v%d, v%d" % (F, F, PI))
        e("v_lshl_add_u32 v%d, v%d, 4, v%d" % (C, MP, C))
        e("v_lshlrev_b32 v%d, 4, v%d" % (F, F))
        e("v_lshl_add_u32 v%d, v%d, 10, v%d" % (V_DCUR + k, C, F))
        e("v_add_u32 v%d, s%d, v%d" % (V_DCUR + k, S_T0 + 2, V_DCUR + k))
        e("v_lshl_or_b32 v%d, v%d, %d, v%d" % (V_MP + k // 6, MP, 5 * (k % 6), V_MP + k // 6))
    e("v_lshrrev_b32 v%d, 1, v%d" % (C, V_DCUR + 8))
    e("v_or_b32 v%d, s%d, v%d" % (C, S_HEXEC, C))
    e("s_cmp_lt_u32 s3, 2")
    e("s_cselect_b64 vcc, -1, 0")
    e("v_cndmask_b32 v%d, v%d, v%d, vcc" % (V_DCUR + 8, C, V_DCUR + 8))
    e("s_waitcnt lgkmcnt(0)")
    e("s_add_u32 s%d, s%d, s%d" % (S_XSRD, S_XPTR, S_T0 + 5))
    e("s_addc_u32 s%d, s%d, 0" % (S_XSRD + 1, S_XPTR + 1))
    e("s_add_u32 s%d, s%d, s%d" % (S_WSRD, S_XPTR + 2, S_OCOL))
    e("s_addc_u32 s%d, s%d, 0" % (S_WSRD + 1, S_XPTR + 3))
    e("s_mov_b64 s[%d:%d], s[%d:%d]" % (S_WB0, S_WB0 + 1, S_WSRD, S_WSRD + 1))
    e("s_mov_b32 s%d, s22" % S_DSRD)
    e("s_mov_b32 s%d, s23" % (S_DSRD + 1))
    e("s_mov_b32 s%d, s3" % S_WAVE)
    if STAMP:
        e("s_add_u32 s%d, s%d, 0x800000" % (S_SSRD, S_WSP))
        e("s_addc_u32 s%d, s%d, 0" % (S_SSRD + 1, S_WSP + 1))
        e("s_mov_b32 s%d, 0x40000" % (S_SSRD + 2))
        e("s_mov_b32 s%d, 0x20000" % (S_SSRD + 3))
        e("s_lshl_b32 s%d, s2, 9" % S_SOFF)
    stamp()
    pro = []
    def P(x):
        for y in (x if isinstance(x, tuple) else (x,)): pro.append(y if isinstance(y, I) else I(y))
    wd = [wdma('A2', None, tap, dh, hf) for (hf, tap) in WORDER for dh in range(2)]
    def PD(pair): P(pair[0]); P("s_nop 0"); P(pair[1])
    for k in range(9): PD(xdma(k))
    for k in range(10): PD(wd[k])
    for s_ in XDMA_POST: P(s_)
    KQ = V_T + 3; TMP = V_T + 4; TMP2 = V_T + 5; TMP3 = V_T + 6
    M = V_M
    P("v_and_b32 v%d, 15, v%d" % (M, L))
    P("v_lshrrev_b32 v%d, 4, v%d" % (KQ, L))
    P("v_lshrrev_b32 v%d, 1, v%d" % (TMP, KQ))
    P("v_lshlrev_b32 v%d, 11, v%d" % (TMP, TMP))
    P("v_and_b32 v%d, 1, v%d" % (TMP2, KQ))
    P("v_lshl_add_u32 v%d, v%d, 9, v%d" % (TMP, TMP2, TMP))
    P("v_lshl_add_u32 v%d, v%d, 4, v%d" % (TMP, M, TMP))
    P("v_add_u32 v%d, s%d, v%d" % (V_WTR, S_WL, TMP))
    P("v_lshlrev_b32 v%d, 14, v%d" % (V_OOFF, M))
    P("v_lshl_add_u32 v%d, v%d, 4, v%d" % (V_OOFF, KQ, V_OOFF))
    for s in range(2):
        for ks in range(2):
            dst = V_XA + s * 2 + ks
            P("v_add_u32 v%d, %d, v%d" % (TMP, s, M))
            P("v_bfe_u32 v%d, v%d, 1, 3" % (TMP2, TMP))
            P("v_add_u32 v%d, %d, v%d" % (TMP3, 4 * ks, KQ))
            P("v_xor_b32 v%d, v%d, v%d" % (TMP2, TMP2, TMP3))
            P("v_lshlrev_b32 v%d, 4, v%d" % (TMP2, TMP2))
            P("v_lshl_add_u32 v%d, v%d, 7, v%d" % (dst, TMP, TMP2))
    P("s_mov_b32 s%d, 0x4038aa3b" % S_C1)
    P("s_mov_b32 s%d, 0xbfb8aa3b" % S_C2)
    P("s_mov_b32 s%d, 0x41f00000" % S_C3)
    P("s_mov_b32 s%d, 0x20000" % (S_OSRD + 3))
    P("s_mov_b32 s%d, %d" % (S_OSRD + 2, BATCHB))
    P("s_movk_i32 s%d, 256" % (S_DSRD + 2))
    P("s_mov_b32 s%d, 0x20000" % (S_DSRD + 3))
    P("s_add_u32 s%d, s%d, s%d" % (S_OSRD, S_OPTR, S_T0 + 5))
    P("s_addc_u32 s%d, s%d, 0" % (S_OSRD + 1, S_OPTR + 1))
    P("s_add_u32 s%d, s%d, s%d" % (S_OBASE, S_TB, S_OCOL))
    P("s_mov_b32 s%d, 6" % S_DC)
    P("s_mov_b32 s%d, 7" % S_TRY)
    P("s_cmp_eq_u32 s%d, 0" % S_NT)
    P("s_cselect_b32 s%d, 5, 4" % S_DT)
    P("s_mov_b64 s[94:95], 0")
    P("s_cmp_eq_u32 s%d, 0" % S_WAVE)
    P("s_cselect_b32 s%d, 6, 64" % S_DW)
    P("s_getreg_b32 s%d, hwreg(HW_REG_XCC_ID, 0, 3)" % S_XCC)
    P("s_mov_b32 s%d, 6" % S_CNT)
    P("v_mov_b32 v%d, %d" % (V_TMP, RANK_LDS))
    P(I("s_barrier", needs=[('xd', k) for k in range(9)]))
    for q in range(PRE): P(xread(0, 0, q, q, ('xr', 'n', q)))
    for tap in T1:
        for nb in range(2):
            for t in range(2): P(wtr('A2', 0, tap, nb, t))
    w, st_pro = simulate(pro, ([('old',)], [], frozenset()))
    emit(pro, w)
    stamp()
    B0P = int(os.environ.get('B0P', '40'))
    prev = [('prev',) + b for b in BLOCKS(16)[NE7:]]
    makers = {
        'c0': lambda r: plan(COLD, first=True, cold=True, reserve=r),
        'm16': lambda r: plan(NAT(16), reserve=r, pf='disp'),
        'c7': lambda r: plan(PM7, last=True, epi=[('own',) + b for b in BLOCKS(16)[:NE7]], reserve=r, pf=True),
        'p16': lambda r: plan(REO2(16), first=True, b_start=B0P, epi=prev, reserve=r),
        'f16': lambda r: plan(PM(16), final=True, epi=[('own',) + b for b in BLOCKS(16)[:NE7F]], reserve=r),
    }
    succ = {'c0': ['m16'], 'm16': ['m16', 'c7', 'f16'], 'c7': ['p16'], 'p16': ['m16'], 'f16': []}
    for S_ in SMALL:
        makers['p%d' % S_] = (lambda S_: lambda r: plan(REO2(S_), first=True, b_start=B0P, epi=prev, reserve=r, S=S_))(S_)
        makers['m%d' % S_] = (lambda S_: lambda r: plan(NAT(S_), reserve=r, pf=True, S=S_))(S_)
        makers['f%d' % S_] = (lambda S_: lambda r: plan(PM(S_), final=True, epi=[('own',) + b for b in BLOCKS(S_)[:NE7G[S_]]], reserve=r, S=S_))(S_)
        succ['c7'].append('p%d' % S_); succ['p%d' % S_] = ['m%d' % S_]; succ['m%d' % S_] = ['m%d' % S_, 'f%d' % S_]; succ['f%d' % S_] = []
    res = {n: {} for n in makers}
    for outer in range(8):
        sq = {n: makers[n](res[n]) for n in makers}
        ent = {n: [] for n in makers}; ent['c0'] = [st_pro]
        wt = {n: {} for n in makers}
        for it in range(12):
            changed = False
            for n in makers:
                nw = dict(wt[n])
                for en in ent[n]: nw = merge(nw, simulate(sq[n], en, wt[n])[0])
                if nw != wt[n]: wt[n] = nw; changed = True
                for en in ent[n]:
                    ex = simulate(sq[n], en, wt[n])[1]
                    for m_ in succ[n]:
                        if ex not in ent[m_]: ent[m_].append(ex); changed = True
            if not changed: break
        assert not changed
        ch2 = False; rep = []
        for n in makers:
            tot = {}
            for i, ins in enumerate(sq[n]):
                if not ins.t.startswith("v_mfma"): tot[ins.gap] = tot.get(ins.gap, 0) + cost(ins)[0]
                if i in wt[n]: tot[ins.gap] = tot.get(ins.gap, 0) + 4
            rep.append((n, sum(max(0, v - 12) for v in tot.values()), len(wt[n])))
            for i in wt[n]:
                g_ = sq[n][i].gap
                if tot[g_] > 12 and g_ not in res[n]:
                    res[n][g_] = 4; ch2 = True
        sys.stderr.write("outer %d %s\n" % (outer, rep))
        if not ch2: break
    lab("L_c0")
    cm("chunk 0 (tile 0)")
    emit(sq['c0'], wt['c0'])
    out.append(".p2align 6")
    lab("L_mid")
    if os.environ.get("LOOPST"): stamp()
    emit(sq['m16'], wt['m16'])
    e("s_sub_u32 s%d, s%d, 1" % (S_DC, S_DC))
    e("s_sub_u32 s%d, s%d, 1" % (S_DW, S_DW))
    e("s_sub_u32 s%d, s%d, 1" % (S_CNT, S_CNT))
    e("s_cmp_lg_u32 s%d, 0" % S_CNT)
    e("s_cbranch_scc1 L_mid")
    stamp()
    e("s_cmp_lg_u32 s%d, 0" % S_DC)
    e("s_cbranch_scc1 L_f16")
    e("s_branch L_c7")
    lab("L_disp")
    cm("wave 0 only: time one chunk, publish per-XCC time, claim the second tile from the matching end of this n-tile's list")
    t = S_T0
    e("s_cmp_eq_u32 s%d, 4" % S_DW)
    e("s_cbranch_scc0 L_d3")
    e("s_lshl_b32 s%d, s%d, 2" % (t + 1, S_XCC))
    e("s_sub_u32 s%d, s94, s96" % t)
    e("s_min_u32 s%d, s%d, 4095" % (t, t))
    e("s_add_u32 s%d, s%d, 0x100000" % (t, t))
    e("v_mov_b32 v%d, s%d" % (V_RANK, t))
    e("s_mov_b64 exec, 1")
    e("buffer_atomic_add v%d, off, s[%d:%d], s%d offset:128" % (V_RANK, S_DSRD, S_DSRD + 3, t + 1))
    e("s_mov_b64 exec, -1")
    e("s_branch L_mid2")
    lab("L_d3")
    e("s_cmp_eq_u32 s%d, 3" % S_DW)
    e("s_cbranch_scc0 L_d2")
    e("v_lshlrev_b32 v%d, 2, v%d" % (V_T, V_M))
    e("s_mov_b64 exec, 0xff")
    e("buffer_load_dword v%d, v%d, s[%d:%d], 0 offen offset:128 sc0 sc1" % (V_RANK, V_T, S_DSRD, S_DSRD + 3))
    e("s_mov_b64 exec, -1")
    e("s_branch L_mid2")
    lab("L_d2")
    e("s_cmp_eq_u32 s%d, 2" % S_DW)
    e("s_cbranch_scc0 L_d1")
    e("s_waitcnt vmcnt(40)")
    e("v_readlane_b32 s%d, v%d, s%d" % (t, V_RANK, S_XCC))
    e("v_lshrrev_b32 v%d, 20, v%d" % (V_T, V_RANK))
    e("v_and_b32 v%d, 0xfffff, v%d" % (V_T + 1, V_RANK))
    e("s_lshr_b32 s%d, s%d, 20" % (t + 1, t))
    e("s_and_b32 s%d, s%d, 0xfffff" % (t, t))
    e("v_mul_u32_u24 v%d, s%d, v%d" % (V_T + 1, t + 1, V_T + 1))
    e("v_mul_u32_u24 v%d, s%d, v%d" % (V_T, t, V_T))
    e("s_mov_b64 exec, 0xff")
    e("v_cmp_gt_u32 vcc, v%d, v%d" % (V_T + 1, V_T))
    e("v_cmp_eq_u32 s[%d:%d], v%d, v%d" % (t + 2, t + 3, V_T + 1, V_T))
    e("s_mov_b64 exec, 1")
    e("v_mov_b32 v%d, 1" % V_RANK)
    e("s_bfm_b32 s%d, s%d, 0" % (t + 1, S_XCC))
    e("s_nop 2")
    e("s_and_b32 s%d, s%d, s%d" % (t + 2, t + 2, t + 1))
    e("s_or_b32 s%d, s%d, vcc_lo" % (t + 2, t + 2))
    e("s_bcnt1_i32_b32 s%d, s%d" % (S_PREF, t + 2))
    e("s_lshl_b32 s%d, s%d, 5" % (t + 1, S_NT))
    e("s_lshl_b32 s%d, s%d, 2" % (t, S_PREF))
    e("s_add_u32 s%d, s%d, s%d" % (t + 1, t + 1, t))
    e("buffer_atomic_add v%d, off, s[%d:%d], s%d sc0" % (V_RANK, S_DSRD, S_DSRD + 3, t + 1))
    e("s_mov_b64 exec, -1")
    e("s_branch L_mid2")
    lab("L_d1")
    e("s_waitcnt vmcnt(40)")
    lab("L_d1b")
    e("v_readfirstlane_b32 s%d, v%d" % (t, V_RANK))
    e("s_nop 3")
    e("s_cmp_lt_u32 s%d, 8" % t)
    e("s_cbranch_scc1 L_d1c")
    cm("region full (unusual placement or snapshot): take the next region that still has a free slot")
    e("s_add_u32 s%d, s%d, 1" % (S_PREF, S_PREF))
    e("s_and_b32 s%d, s%d, 7" % (S_PREF, S_PREF))
    e("s_lshl_b32 s%d, s%d, 5" % (t + 1, S_NT))
    e("s_lshl_b32 s%d, s%d, 2" % (t, S_PREF))
    e("s_add_u32 s%d, s%d, s%d" % (t + 1, t + 1, t))
    e("v_mov_b32 v%d, 1" % V_RANK)
    e("s_mov_b64 exec, 1")
    e("buffer_atomic_add v%d, off, s[%d:%d], s%d sc0" % (V_RANK, S_DSRD, S_DSRD + 3, t + 1))
    e("s_mov_b64 exec, -1")
    e("s_sub_u32 s%d, s%d, 1" % (S_TRY, S_TRY))
    e("s_waitcnt vmcnt(0)")
    e("s_cmp_lg_u32 s%d, 0" % S_TRY)
    e("s_cbranch_scc1 L_d1b")
    e("v_readfirstlane_b32 s%d, v%d" % (t, V_RANK))
    e("s_nop 3")
    e("s_and_b32 s%d, s%d, 7" % (t, t))
    lab("L_d1c")
    e("s_lshl_b32 s%d, s%d, 3" % (t + 1, S_PREF))
    e("s_add_u32 s%d, s%d, s%d" % (t, t, t + 1))
    e("v_mov_b32 v%d, s%d" % (V_RANK, t))
    e("ds_write_b32 v%d, v%d" % (V_TMP, V_RANK))
    e("s_branch L_pf")
    lab("L_c7")
    cm("decode the claimed second tile")
    r = S_T0
    e("ds_read_b32 v%d, v%d" % (V_RANK, V_TMP))
    e("s_waitcnt lgkmcnt(0)")
    e("v_readfirstlane_b32 s%d, v%d" % (r, V_RANK))
    e("s_nop 3")
    e("s_lshr_b32 s%d, s%d, 3" % (r + 1, r))
    e("s_and_b32 s%d, s%d, 3" % (r + 2, r))
    e("s_bitcmp1_b32 s%d, 2" % r)
    e("s_cselect_b32 s%d, %d, 0" % (S_NB, BATCHB))
    classes = []
    base = 8192
    for k_, S_ in enumerate(PATTERN):
        if not classes or classes[-1][0] != S_: classes.append((S_, k_, base))
        base += 64 * S_
    S0, k0, b0 = classes[0]
    e("s_movk_i32 s%d, %d" % (S_SMALL, S0))
    e("s_mov_b32 s%d, %d" % (r + 3, b0 - 64 * S0 * k0))
    for (S_, k_, b_) in classes[1:]:
        e("s_cmp_ge_u32 s%d, %d" % (r + 1, k_))
        e("s_cselect_b32 s%d, %d, s%d" % (S_SMALL, S_, S_SMALL))
        e("s_cselect_b32 s%d, %d, s%d" % (r + 3, b_ - 64 * S_ * k_, r + 3))
    e("s_lshl_b32 s%d, s%d, 2" % (r + 1, r + 1))
    e("s_add_u32 s%d, s%d, s%d" % (r + 1, r + 1, r + 2))
    e("s_mul_i32 s%d, s%d, s%d" % (r + 1, r + 1, S_SMALL))
    e("s_lshl_b32 s%d, s%d, 4" % (r + 1, r + 1))
    e("s_add_u32 s%d, s%d, s%d" % (r + 1, r + 1, r + 3))
    e("s_lshl_b32 s%d, s%d, 10" % (S_NTB, r + 1))
    e("s_sub_u32 s%d, s%d, s%d" % (S_DELTA, S_NTB, S_TB))
    e("s_mov_b32 s%d, L_p16-L_c0" % (r + 1))
    for S_ in SMALL:
        e("s_cmp_eq_u32 s%d, %d" % (S_SMALL, S_))
        e("s_cselect_b32 s%d, L_p%d-L_c0, s%d" % (r + 1, S_, r + 1))
    e("s_add_u32 s88, s86, s%d" % (r + 1))
    e("s_addc_u32 s89, s87, 0")
    e("s_sub_u32 s%d, s%d, 16" % (S_K, S_SMALL))
    e("s_lshl_b32 s%d, s%d, 10" % (S_K, S_K))
    cm("chunk 7 (tile 0)")
    emit(sq['c7'], wt['c7'])
    stamp()
    for S_ in SMALL:
        e("s_cmp_eq_u32 s%d, %d" % (S_SMALL, S_))
        e("s_cbranch_scc1 L_p%d" % S_)
    lab("L_p16")
    cm("chunk 0 (tile 1, 256 rows)")
    emit(sq['p16'], wt['p16'])
    out_switch()
    e("v_min_u32 v47, L_e16-L_f16-4, v47")
    e("s_add_u32 s88, s86, L_f16-L_c0")
    e("s_addc_u32 s89, s87, 0")
    stamp()
    e("s_branch L_mid")
    lab("L_f16")
    cm("chunk 7 (tile 1, 256 rows)")
    emit(sq['f16'], wt['f16'])
    stamp()
    tail(16, NE7F)
    for S_ in SMALL:
        lab("L_p%d" % S_)
        cm("chunk 0 (tile 1, %d rows)" % (16 * S_))
        emit(sq['p%d' % S_], wt['p%d' % S_])
        out_switch()
        e("v_min_u32 v47, L_e%d-L_f%d-4, v47" % (S_, S_))
        e("s_add_u32 s88, s86, L_f%d-L_c0" % S_)
        e("s_addc_u32 s89, s87, 0")
        stamp()
        out.append(".p2align 6")
        lab("L_mid%d" % S_)
        if os.environ.get("LOOPST"): stamp()
        emit(sq['m%d' % S_], wt['m%d' % S_])
        e("s_sub_u32 s%d, s%d, 1" % (S_CNT, S_CNT))
        e("s_cmp_lg_u32 s%d, 0" % S_CNT)
        e("s_cbranch_scc1 L_mid%d" % S_)
        stamp()
        lab("L_f%d" % S_)
        cm("chunk 7 (tile 1, %d rows)" % (16 * S_))
        emit(sq['f%d' % S_], wt['f%d' % S_])
        stamp()
        tail(S_, NE7G[S_])
    lab("L_done")
    e("s_endpgm")

hdr = open("cdna_kernels/%s.s.ref" % NAME).read().split("\n")
for l in hdr:
    if l.startswith(";") and "@launch" not in l and "Override" not in l and "grid=ceil" not in l:
        out.append(l)
out.append("; @launch grid=(256,1,1) block=(256,1,1) lds=%d" % LDS_BYTES)
DOC = """
Generated by a hand-written Python scheduler (gen/gen14_good.py); no compiler output.
out[b,t,e] = tanh(f)*sigmoid(g), (f,g) = sum_i x[b,t+2i-8,:] @ w[i]  ->  GEMM M=32000 N=1024 K=5*512, bf16 MFMA 16x16x32, fp32 accumulate.
One workgroup (4 waves, 512 registers each) per CU, two tiles per workgroup; tile = 16*S time steps x (128 f + 128 g) columns,
every wave owns all rows x (32 f + 32 g) columns (256 accumulators).  MFMA row blocks are the strided sets {t0+p+2j+S*m}: a tap shift
is then just another fragment of the same family, so 12 x fragments serve 8 blocks x 5 taps.  The 5 taps of an accumulator are issued back to back.
x: LDS-DMA of 64-channel chunks, double buffered, one barrier per chunk, zero padding / tails by SRD range check.
w: per-wave LDS-DMA staging in native layout, transposed into MFMA fragments by ds_read_b64_tr_b16, register double buffer.
Epilogue (exp2/rcp form with clamp) is interleaved in the free issue slots of the neighbouring chunks' MFMAs.
Second tiles (rows 8192..15999 of each batch) have S=16/15/14 in fixed regions; a workgroup claims one through counters in d_debug,
slower dies (timed inside this launch) take the shorter tiles.  Row -> code path is fixed, so the output does not depend on who computes it.
"""
for l in DOC.strip().split("\n"): out.append("; " + l)
out.append('.amdgcn_target "amdgcn-amd-amdhsa--gfx950"')
out.append(".text")
main_kernel()
out.append('.section .rodata,"a"')
out.append(".p2align 6")
out.append(".amdhsa_kernel %s_kernel" % NAME)
out += ["  .amdhsa_next_free_vgpr 512", "  .amdhsa_next_free_sgpr 100", "  .amdhsa_accum_offset 256",
        "  .amdhsa_group_segment_fixed_size 0", "  .amdhsa_kernarg_size 40", "  .amdhsa_user_sgpr_count 2",
        "  .amdhsa_user_sgpr_kernarg_segment_ptr 1", "  .amdhsa_system_sgpr_workgroup_id_x 1", ".end_amdhsa_kernel"]
dst = sys.argv[1] if len(sys.argv) > 1 else "cdna_kernels/%s.s" % NAME
open(dst, "w").write("\n".join(out) + "\n")
print("wrote", dst, len(out), "lines")
```
